```python
import torch

def _softmax(x, axis=-1):
    return torch.softmax(x, dim=axis)
def _gelu(x):
    return torch.nn.functional.gelu(x, approximate="tanh")
def _silu(x):
    return torch.nn.functional.silu(x)
def _sigmoid(x):
    return torch.sigmoid(x)
def _layernorm(x, axis=-1, eps=1e-5):
    m = x.mean(dim=axis, keepdim=True)
    v = x.var(dim=axis, keepdim=True, unbiased=False)
    return (x - m) / torch.sqrt(v + eps)
def _scatter_add(tgt, idx, src, axis=0):
    return tgt.clone().index_add_(axis, idx, src)
def _segment_sum(src, seg, n):
    out = torch.zeros((n,) + src.shape[1:], dtype=src.dtype)
    return out.index_add_(0, seg, src)
def _pad(x, pw):
    flat = tuple(v for pair in reversed(pw) for v in pair)
    return torch.nn.functional.pad(x, flat)

kernel_name = 'concat_heads__ssm_conv_s5__ssm_conv_s4d__prompt'

def setup_inputs():

    _w = (lambda a: (lambda t: t.to(torch.bfloat16) if t.is_floating_point() else t)(torch.as_tensor(a)))
    def _A_setup():
        B, S, D = 1, 2048, 576
        P = D
        Lambda_re = -0.5 * (lambda _x: torch.exp(torch.as_tensor(_x)))((lambda *s: torch.randn(*s, dtype=torch.bfloat16) * 0.2)(P))
        Lambda_im = (lambda *s: torch.randn(*s, dtype=torch.bfloat16) * 0.4)(P) * 1.0
        B_re = (lambda *s: torch.randn(*s, dtype=torch.bfloat16) * 0.2)(P, D) * (D ** -0.5)
        B_im = (lambda *s: torch.randn(*s, dtype=torch.bfloat16) * 0.2)(P, D) * (D ** -0.5)
        C_re = (lambda *s: torch.randn(*s, dtype=torch.bfloat16) * 0.2)(D, P) * (P ** -0.5)
        C_im = (lambda *s: torch.randn(*s, dtype=torch.bfloat16) * 0.2)(D, P) * (P ** -0.5)
        log_dt = (lambda *s: torch.randn(*s, dtype=torch.bfloat16) * 0.2)(P) * 0.3 - 2.0
        Dskip = (lambda *s: torch.randn(*s, dtype=torch.bfloat16) * 0.05)(D)
        return {
            "x": _w((lambda *s: torch.randn(*s, dtype=torch.bfloat16) * 0.05)(B, S, D)),
            "Lambda_re": _w(Lambda_re),
            "Lambda_im": _w(Lambda_im),
            "B_re": _w(B_re),
            "B_im": _w(B_im),
            "C_re": _w(C_re),
            "C_im": _w(C_im),
            "log_dt": _w(log_dt),
            "Dskip": _w(Dskip),
        }
    _A_in = _A_setup()

    def _B_setup():
        Bsz, L, D, N = 1, 2048, 576, 128
        return {
            "u": _w((lambda *s: torch.randn(*s, dtype=torch.bfloat16) * 0.05)(Bsz, L, D)),
            "log_A_real": _w((lambda *s: torch.randn(*s, dtype=torch.bfloat16) * 3.2)(D, N) * 0.5),
            "A_imag": _w((lambda *s: torch.randn(*s, dtype=torch.bfloat16) * 0.05)(D, N) * 3.14),
            "C_real": _w((lambda *s: torch.randn(*s, dtype=torch.bfloat16) * 0.1)(D, N) / N ** 0.5),
            "C_imag": _w((lambda *s: torch.randn(*s, dtype=torch.bfloat16) * 0.1)(D, N) / N ** 0.5),
            "log_dt": _w((lambda *s: torch.randn(*s, dtype=torch.bfloat16) * 0.05)(D) * 0.5 - 4.0),
            "D_skip": _w((lambda *s: torch.randn(*s, dtype=torch.bfloat16) * 0.05)(D)),
        }
    _B_in = _B_setup()

    return {
        "A_x": _A_in["x"],
        "A_Lambda_re": _A_in["Lambda_re"],
        "A_Lambda_im": _A_in["Lambda_im"],
        "A_B_re": _A_in["B_re"],
        "A_B_im": _A_in["B_im"],
        "A_C_re": _A_in["C_re"],
        "A_C_im": _A_in["C_im"],
        "A_log_dt": _A_in["log_dt"],
        "A_Dskip": _A_in["Dskip"],
        "B_u": _B_in["u"],
        "B_log_A_real": _B_in["log_A_real"],
        "B_A_imag": _B_in["A_imag"],
        "B_C_real": _B_in["C_real"],
        "B_C_imag": _B_in["C_imag"],
        "B_log_dt": _B_in["log_dt"],
        "B_D_skip": _B_in["D_skip"],
    }

def reference(A_x, A_Lambda_re, A_Lambda_im, A_B_re, A_B_im, A_C_re, A_C_im, A_log_dt, A_Dskip, B_u, B_log_A_real, B_A_imag, B_C_real, B_C_imag, B_log_dt, B_D_skip):
    def _A_ref(x, Lambda_re, Lambda_im, B_re, B_im, C_re, C_im, log_dt, Dskip):
        Bsz, L, H = x.shape
        Lam = Lambda_re + 1j * Lambda_im
        Bmat = B_re + 1j * B_im
        Cmat = C_re + 1j * C_im
        dt = torch.exp(log_dt)
        Lam_bar = torch.exp(dt * Lam)
        B_bar = ((Lam_bar - 1.0) / Lam)[:, None] * Bmat
        Bu = torch.einsum("bld,pd->blp", x + 0j, B_bar)
        h = torch.zeros_like(Bu[:, 0, :])
        hs = []
        for t in range(L):
            h = Lam_bar[None, :] * h + Bu[:, t, :]
            hs.append(h)
        hseq = torch.stack(hs, 1)
        y = 2.0 * torch.einsum("blp,dp->bld", hseq, Cmat).real + x * Dskip[None, None, :]
        return y

    def _B_ref(u, log_A_real, A_imag, C_real, C_imag, log_dt, D_skip):
        L = u.shape[1]
        dt = torch.exp(log_dt)
        A = -torch.exp(log_A_real) + 1j * A_imag
        C = (C_real + 1j * C_imag) * dt[:, None]
        pos = (lambda x, dt: x.to(dt))(torch.arange(L), log_dt.dtype)
        P = torch.exp((A * dt[:, None])[:, :, None] * pos[None, None, :])
        K = 2.0 * torch.einsum("dn,dnl->dl", C, P).real
        L2 = 2 * L
        u_t = (lambda x, *d: x.permute(*d))(u, 0, 2, 1)
        Kf = (lambda x, *a, **k: torch.fft.rfft(x.float(), *a, **k))(K, L2)
        Uf = (lambda x, *a, **k: torch.fft.rfft(x.float(), *a, **k))(u_t, L2)
        y = (lambda x, *a, **k: torch.fft.irfft(x, *a, **k).to(torch.bfloat16))(Uf * Kf[None, :, :], L2)[:, :, :L]
        y = (lambda x, *d: x.permute(*d))(y, 0, 2, 1)
        return y + u * D_skip[None, None, :]

    a = _A_ref(A_x, A_Lambda_re, A_Lambda_im, A_B_re, A_B_im, A_C_re, A_C_im, A_log_dt, A_Dskip)
    b = _B_ref(B_u, B_log_A_real, B_A_imag, B_C_real, B_C_imag, B_log_dt, B_D_skip)
    return torch.concatenate([a, b], axis=-1)
```

```python
import re

TRANS = ("v_exp_f32", "v_log_f32", "v_rcp_f32", "v_rsq_f32", "v_sqrt_f32", "v_sin_f32", "v_cos_f32")
REG_RE = re.compile(r"(?<![\w.])([vas])(?:(\d+)|\[(\d+):(\d+)\])(?![\w])")

def regs_of(tok):
    out = set()
    for m in REG_RE.finditer(tok):
        k = m.group(1)
        if m.group(2) is not None:
            out.add((k, int(m.group(2))))
        else:
            for i in range(int(m.group(3)), int(m.group(4)) + 1):
                out.add((k, i))
    for name in ("vcc", "exec", "m0"):
        if re.search(r"(?<![\w])%s(?![\w])" % name, tok) or re.search(r"(?<![\w])%s_(lo|hi)(?![\w])" % name, tok):
            out.add((name, 0))
    return out

def split_ops(s):
    ops = []; cur = ""; depth = 0
    for ch in s:
        if ch == "[": depth += 1
        if ch == "]": depth -= 1
        if ch == "," and depth == 0:
            ops.append(cur.strip()); cur = ""
        else:
            cur += ch
    if cur.strip(): ops.append(cur.strip())
    return ops

class Ins:
    def __init__(self, text):
        self.text = text
        t = text.split(";")[0].strip()
        parts = t.split(None, 1)
        self.op = parts[0]
        rest = parts[1] if len(parts) > 1 else ""
        ops = split_ops(rest)
        if ops:
            last = ops[-1].split()
            self.mods = " ".join(last[1:])
            ops[-1] = last[0] if last else ""
        else:
            self.mods = ""
        self.ops = ops
        op = self.op
        self.mfma = op.startswith("v_mfma")
        self.valu = op.startswith("v_") and not self.mfma
        self.trans = op in TRANS
        self.vmem = op.startswith("buffer_") or op.startswith("global_")
        self.ds = op.startswith("ds_")
        self.salu = op.startswith("s_")
        self.dpp = "dpp" in op or "row_" in self.mods or "wave_" in self.mods or "quad_perm" in self.mods
        self.permlane = op.startswith("v_permlane")
        self.readlane = op.startswith("v_readlane") or op.startswith("v_readfirstlane")
        self.ws = 1
        if op == "s_nop": self.ws = int(ops[0], 0) + 1
        d = set(); u = set()
        R = [regs_of(o) for o in ops]
        self.lds_dma = self.vmem and re.search(r"(?<![\w])lds(?![\w])", self.mods) is not None
        if self.mfma:
            d = R[0]; u = R[1] | R[2] | R[3]
            self.A = R[1]; self.B = R[2]; self.C = R[3]
            self.passes = 4 if "16x16x32" in op else 8
        elif self.valu:
            if self.permlane:
                d = R[0] | R[1]; u = R[0] | R[1]
            elif op.startswith("v_cmp"):
                d = R[0]; u = set().union(*R[1:])
            elif op.startswith("v_add_co") or op.startswith("v_addc_co") or op.startswith("v_sub_co"):
                d = R[0] | R[1]; u = set().union(*R[2:])
            else:
                d = R[0]; u = set().union(*R[1:]) if len(R) > 1 else set()
                if op.startswith("v_fmac") or op.startswith("v_pk_fmac") or self.dpp or op.startswith("v_writelane"):
                    u |= R[0]
        elif self.vmem:
            if "store" in op or "atomic" in op:
                u = set().union(*R)
                self.data = R[0] if op.startswith("buffer_") else R[1]
                if "atomic" in op and "sc0" in self.mods: d = self.data
            elif self.lds_dma:
                u = set().union(*R) | {("m0", 0)}
            else:
                d = R[0]; u = set().union(*R[1:])
        elif self.ds:
            if op.startswith("ds_write") or op.startswith("ds_add"):
                u = set().union(*R)
            else:
                d = R[0]; u = set().union(*R[1:])
        elif self.salu:
            if op.startswith("s_cmp") or op.startswith("s_cbranch") or op in ("s_nop", "s_waitcnt", "s_barrier", "s_endpgm", "s_branch", "s_sleep", "s_setprio"):
                u = set().union(*R) if R else set()
            else:
                d = R[0] if R else set(); u = set().union(*R[1:]) if len(R) > 1 else set()
                if "saveexec" in op: d = d | {("exec", 0)}
        self.d = d; self.u = u
        self.wide_store = self.vmem and "store" in op and ("x4" in op or "x3" in op)

def need(prod, cons):
    n = 0
    pv = {r for r in prod.d if r[0] in "va" and len(r[0]) == 1}
    ps = {r for r in prod.d if r[0] in ("s", "vcc")}
    if prod.valu:
        if cons.mfma and pv & cons.u: n = max(n, 2)
        if prod.trans and cons.valu and not cons.trans and pv & cons.u: n = max(n, 1)
        if prod.trans and (cons.vmem or cons.ds) and pv & cons.u: n = max(n, 1)
        if (cons.permlane or (cons.valu and cons.dpp)) and pv & cons.u: n = max(n, 2)
        if cons.readlane and pv & cons.u: n = max(n, 1)
        if ps:
            if cons.valu and ps & cons.u: n = max(n, 4 if cons.readlane or cons.op.startswith("v_writelane") else 2)
            if cons.vmem and ps & cons.u: n = max(n, 5)
            if cons.salu and ps & cons.u: n = max(n, 1)
    if prod.mfma:
        big = 8 if prod.passes == 4 else 12
        ovl = 6 if prod.passes == 4 else 10
        if cons.mfma:
            if prod.d & (cons.A | cons.B): n = max(n, big)
            if prod.d & cons.C:
                if not (prod.d == cons.C and prod.passes == cons.passes): n = max(n, ovl)
            elif prod.d & cons.d: n = max(n, ovl)
        else:
            if prod.d & (cons.u | cons.d): n = max(n, big)
            if cons.valu and prod.C & cons.d: n = max(n, 3 if prod.passes == 4 else 7)
    if prod.salu and ("m0", 0) in prod.d and cons.lds_dma: n = max(n, 1)
    if prod.wide_store and prod.data & cons.d and not cons.salu: n = max(n, 2)
    return n

class Asm:
    def __init__(self):
        self.lines = []
        self.hist = []
        self.nops = 0
        self.count = 0
    def raw(self, s):
        self.lines.append(s)
    def label(self, name):
        self.lines.append(name + ":")
    def fence(self, n=12):
        dist = 0; worst = 0
        for p in reversed(self.hist[-16:]):
            w = 0
            if p.mfma: w = 8 if p.passes == 4 else 12
            elif p.valu: w = 5 if any(r[0] in ("s", "vcc") for r in p.d) else 2
            elif p.wide_store: w = 2
            elif p.salu and ("m0", 0) in p.d: w = 1
            worst = max(worst, w - dist)
            dist += p.ws
        if worst > 0: self("s_nop %d" % (worst - 1))
    def __call__(self, text):
        for t in text.strip().split("\n"):
            t = t.strip()
            if not t or t.startswith(";"):
                if t: self.lines.append("    " + t)
                continue
            ins = Ins(t)
            dist = 0; pad = 0
            for p in reversed(self.hist[-16:]):
                n = need(p, ins)
                if n - dist > pad: pad = n - dist
                dist += p.ws
                if dist >= 12: break
            if pad > 0:
                nop = Ins("s_nop %d" % (pad - 1))
                self.hist.append(nop); self.lines.append("    " + nop.text); self.nops += pad
            self.hist.append(ins); self.lines.append("    " + t); self.count += 1
    def text(self):
        return "\n".join(self.lines) + "\n"

def vr(b, n=1, k="v"):
    return f"{k}{b}" if n == 1 else f"{k}[{b}:{b+n-1}]"
def ar(b, n=1): return vr(b, n, "a")
def sr(b, n=1): return vr(b, n, "s")
```

```python
import sys
sys.path.insert(0, "work")
from asmlib import *

LOG2E = "0x3fb8aa3b"
INV2PI = "0.15915494"
WS_H = 0
WS_S = 8 << 20
H_BYTES = 16 * 2 * 36 * 4096
S_BYTES = 16 * 576 * 8

class Ctr:
    def __init__(self, a, name, mx):
        self.a = a; self.name = name; self.q = []; self.mx = mx
    def issue(self, tag):
        self.q.append(tag)
        assert len(self.q) <= self.mx, (self.name, len(self.q))
    def wait(self, tag):
        if tag not in self.q: return
        idx = max(i for i, t in enumerate(self.q) if t == tag)
        n = len(self.q) - 1 - idx
        self.a(f"s_waitcnt {self.name}({n})")
        self.q = self.q[idx + 1:]
    def wait_all(self):
        self.a(f"s_waitcnt {self.name}(0)"); self.q = []

def srd(a, d, base, nbytes, off=0):
    if off:
        a(f"s_add_u32 s{d}, s{base}, {off}")
        a(f"s_addc_u32 s{d+1}, s{base+1}, 0")
    else:
        a(f"s_mov_b32 s{d}, s{base}")
        a(f"s_mov_b32 s{d+1}, s{base+1}")
    a(f"s_mov_b32 s{d+2}, {nbytes}")
    a(f"s_mov_b32 s{d+3}, 0x00020000")

def cexp(dst_re, dst_im, er, th, k, t0, t1):
    o = []
    if k is None:
        o.append(f"v_exp_f32 v{t0}, v{er}")
        o.append(f"v_rndne_f32 v{dst_re}, v{th}")
        o.append(f"v_sub_f32 v{t1}, v{th}, v{dst_re}")
    else:
        o.append(f"v_mul_f32 v{t0}, {k}, v{er}")
        o.append(f"v_mul_f32 v{t1}, {k}, v{th}")
        o.append(f"v_exp_f32 v{t0}, v{t0}")
        o.append(f"v_rndne_f32 v{dst_re}, v{t1}")
        o.append(f"v_sub_f32 v{t1}, v{t1}, v{dst_re}")
    o.append(f"v_cos_f32 v{dst_re}, v{t1}")
    o.append(f"v_sin_f32 v{dst_im}, v{t1}")
    o.append(f"v_mul_f32 v{dst_re}, v{dst_re}, v{t0}")
    o.append(f"v_mul_f32 v{dst_im}, v{dst_im}, v{t0}")
    return o

def f32hex(x):
    import struct
    return "0x%08x" % struct.unpack("<I", struct.pack("<f", x))[0]

def cmul_pk(z, x, f):
    return [f"v_pk_mul_f32 {vr(z,2)}, {vr(x,2)}, {vr(f,2)} op_sel:[0,0] op_sel_hi:[1,0]",
            f"v_pk_fma_f32 {vr(z,2)}, {vr(x,2)}, {vr(f,2)}, {vr(z,2)} op_sel:[1,1,0] op_sel_hi:[0,1,1] neg_lo:[1,0,0]"]

def cfma(dr, di, fr, fi, xr, xi, ar_, ai_):
    return [f"v_fma_f32 v{dr}, v{fr}, v{xr}, v{ar_}",
            f"v_fma_f32 v{di}, v{fr}, v{xi}, v{ai_}",
            f"v_fma_f32 v{dr}, -v{fi}, v{xi}, v{dr}",
            f"v_fma_f32 v{di}, v{fi}, v{xr}, v{di}"]

def pk_fma_b(d, x, f, hi, c, neg=False):
    s = 1 if hi else 0
    n = " neg_lo:[0,1,0] neg_hi:[0,1,0]" if neg else ""
    return f"v_pk_fma_f32 {vr(d,2)}, {vr(x,2)}, {vr(f,2)}, {vr(c,2)} op_sel:[0,{s},0] op_sel_hi:[1,{s},1]{n}"
def pk_mul_b(d, x, f, hi, neg=False):
    s = 1 if hi else 0
    n = " neg_lo:[0,1] neg_hi:[0,1]" if neg else ""
    return f"v_pk_mul_f32 {vr(d,2)}, {vr(x,2)}, {vr(f,2)} op_sel:[0,{s}] op_sel_hi:[1,{s}]{n}"

def gen_a1(a, name):
    vm = Ctr(a, "vmcnt", 63); lg = Ctr(a, "lgkmcnt", 15)
    a(f"s_cmp_ge_u32 s2, 144")
    a(f"s_cbranch_scc1 {name}_end")
    a("s_load_dwordx16 s[4:19], s[0:1], 0")
    a("s_load_dwordx4 s[20:23], s[0:1], 136")
    sC, sS, sW, sKO, sXB, sBB, sT0, sT1, sLB = 48, 49, 50, 51, 52, 53, 54, 55, 56
    a(f"s_and_b32 s{sC}, s2, 7")
    a(f"s_lshl_b32 s{sC}, s{sC}, 1")
    a(f"s_lshr_b32 s{sS}, s2, 3")
    a(f"s_cmp_ge_u32 s{sS}, 9")
    a(f"s_cselect_b32 s{sT0}, 1, 0")
    a(f"s_add_u32 s{sC}, s{sC}, s{sT0}")
    a(f"s_mul_i32 s{sT1}, s{sT0}, 9")
    a(f"s_sub_u32 s{sS}, s{sS}, s{sT1}")
    a(f"s_lshl_b32 s{sT0}, s{sT0}, 2")
    a(f"s_add_u32 s{sKO}, s{sS}, s{sT0}")
    a(f"s_cmp_ge_u32 s{sKO}, 9")
    a(f"s_cselect_b32 s{sT0}, 9, 0")
    a(f"s_sub_u32 s{sKO}, s{sKO}, s{sT0}")
    a(f"s_lshl_b32 s{sKO}, s{sKO}, 7")
    vL, vPC, vQ, vD0, vD1, vBO, vA0, vA1, vT, vT2, vSO, vP2, vHO, vFL, vLO = range(1, 16)
    a(f"v_lshrrev_b32 v{vT}, 6, v0")
    a(f"v_and_b32 v{vL}, 63, v0")
    a(f"v_readfirstlane_b32 s{sW}, v{vT}")
    a(f"v_and_b32 v{vPC}, 15, v0")
    a(f"v_lshrrev_b32 v{vQ}, 4, v{vL}")
    a(f"v_lshrrev_b32 v{vT}, 5, v{vL}")
    a(f"v_lshlrev_b32 v{vD0}, 5, v{vT}")
    a(f"v_bfe_u32 v{vT}, v{vL}, 3, 1")
    a(f"v_lshl_add_u32 v{vD0}, v{vT}, 4, v{vD0}")
    a(f"v_bfe_u32 v{vT}, v{vL}, 4, 1")
    a(f"v_add_u32 v{vD0}, v{vD0}, v{vT}")
    a(f"v_mul_u32_u24 v{vD0}, 1152, v{vD0}")
    a(f"v_and_b32 v{vT}, 7, v{vL}")
    a(f"v_xor_b32 v{vT}, v{vT}, v{vQ}")
    a(f"v_xor_b32 v{vT2}, 4, v{vT}")
    a(f"v_lshl_add_u32 v{vD1}, v{vT2}, 4, v{vD0}")
    a(f"v_add_u32 v{vD1}, {64*1152}, v{vD1}")
    a(f"v_lshl_add_u32 v{vD0}, v{vT}, 4, v{vD0}")
    a(f"v_mul_u32_u24 v{vBO}, 1152, v{vPC}")
    a(f"v_lshl_add_u32 v{vBO}, v{vQ}, 4, v{vBO}")
    a(f"v_lshrrev_b32 v{vT}, 1, v{vPC}")
    a(f"v_xor_b32 v{vT}, v{vT}, v{vQ}")
    a(f"v_lshlrev_b32 v{vT}, 4, v{vT}")
    a(f"v_lshl_add_u32 v{vA0}, v{vPC}, 7, v{vT}")
    a(f"v_xor_b32 v{vA1}, 64, v{vA0}")
    a(f"s_mul_i32 s{sXB}, s{sC}, {128*1152}")
    a(f"s_mul_i32 s{sT0}, s{sW}, {4*1152}")
    a(f"s_add_u32 s{sXB}, s{sXB}, s{sT0}")
    a(f"s_lshl_b32 s{sT0}, s{sS}, 2")
    a(f"s_add_u32 s{sT0}, s{sT0}, s{sW}")
    sPG = 57
    a(f"s_mov_b32 s{sPG}, s{sT0}")
    a(f"s_mul_i32 s{sBB}, s{sT0}, {16*1152}")
    a(f"s_lshl_b32 s{sLB}, s{sW}, 12")
    a(f"s_lshl_b32 s{sT1}, s{sT0}, 4")
    a(f"v_add_u32 v{vT}, s{sT1}, v{vPC}")
    a(f"v_lshlrev_b32 v{vP2}, 1, v{vT}")
    a(f"s_mul_i32 s{sT1}, s{sC}, 576")
    a(f"v_add_u32 v{vT}, s{sT1}, v{vT}")
    a(f"v_lshlrev_b32 v{vSO}, 3, v{vT}")
    a(f"v_mul_u32_u24 v{vT}, {4*4608}, v{vQ}")
    a(f"v_sub_u32 v{vLO}, v{vSO}, v{vT}")
    a(f"v_cmp_eq_u32 vcc, 3, v{vQ}")
    a(f"v_mov_b32 v{vT}, 0x7fffffff")
    a(f"v_cndmask_b32 v{vSO}, v{vT}, v{vSO}, vcc")
    a(f"v_lshrrev_b32 v{vT}, 1, v{vPC}")
    a(f"v_and_b32 v{vT}, 4, v{vT}")
    a(f"v_xor_b32 v{vT}, v{vT}, v{vPC}")
    a(f"v_lshlrev_b32 v{vHO}, 5, v{vT}")
    a(f"v_lshrrev_b32 v{vT}, 1, v{vQ}")
    a(f"v_lshl_add_u32 v{vHO}, v{vT}, 9, v{vHO}")
    a(f"v_and_b32 v{vT}, 1, v{vQ}")
    a(f"v_lshl_add_u32 v{vHO}, v{vT}, 4, v{vHO}")
    a("s_waitcnt lgkmcnt(0)")
    srd(a, 24, 4, 2048 * 1152)
    srd(a, 28, 10, 576 * 1152)
    srd(a, 32, 12, 576 * 1152)
    srd(a, 36, 22, H_BYTES, WS_H)
    srd(a, 40, 22, S_BYTES, WS_S)
    srd(a, 44, 20, 256)
    vLre, vLim, vLdt = 40, 41, 42
    a("v_mov_b32 v44, -1")
    a("v_mov_b32 v45, -1")
    a(f"buffer_store_dwordx2 v[44:45], v{vSO}, s[40:43], 0 offen sc1"); vm.issue("clr")
    a(f"global_load_ushort v{vLre}, v{vP2}, s[6:7]"); vm.issue("par")
    a(f"global_load_ushort v{vLim}, v{vP2}, s[8:9]"); vm.issue("par")
    a(f"global_load_ushort v{vLdt}, v{vP2}, s[18:19]"); vm.issue("par")
    def issue_step(i):
        a(f"s_add_u32 s{sT0}, s{sXB}, s{sKO}")
        a(f"s_add_u32 s{sT1}, s{sT0}, 2304")
        for e in range(4):
            a(f"s_add_u32 m0, s{sLB}, {i*16384 + e*1024}")
            a(f"buffer_load_dwordx4 v{vD1 if e & 1 else vD0}, s[24:27], s{sT1 if e >> 1 else sT0} offen lds"); vm.issue(f"st{i}")
        a(f"s_add_u32 s{sT0}, s{sBB}, s{sKO}")
        for ks in range(2):
            for ar_i in range(2):
                r = 16 * i + 8 * ks + 4 * ar_i
                a(f"buffer_load_dwordx4 {ar(r,4)}, v{vBO}, s[{28+4*ar_i}:{31+4*ar_i}], s{sT0} offen offset:{64*ks}"); vm.issue(f"st{i}")
        a(f"s_add_u32 s{sKO}, s{sKO}, 128")
        a(f"s_cmp_ge_u32 s{sKO}, 1152")
        a(f"s_cselect_b32 s{sKO}, 0, s{sKO}")
    for i in range(7): issue_step(i)
    L1, L16, L32, L64, MR, MI, M3, WL, CF = 16, 18, 20, 22, 24, 26, 28, 30, 38
    ER, TH, T0, T1, T2, T3, KQ = 46, 47, 48, 49, 50, 51, 52
    WT = 192
    fill = []
    fill += [f"v_lshlrev_b32 v{vLre}, 16, v{vLre}", f"v_lshlrev_b32 v{vLim}, 16, v{vLim}", f"v_lshlrev_b32 v{vLdt}, 16, v{vLdt}",
             f"v_mul_f32 v{vLdt}, {LOG2E}, v{vLdt}", f"v_exp_f32 v{vLdt}, v{vLdt}", f"v_cvt_pk_bf16_f32 v{vLdt}, 0, v{vLdt}",
             f"v_mul_f32 v{ER}, v{vLdt}, v{vLre}", f"v_mul_f32 v{TH}, v{vLdt}, v{vLim}",
             f"v_mul_f32 v{ER}, {LOG2E}, v{ER}", f"v_mul_f32 v{TH}, {INV2PI}, v{TH}"]
    fill += cexp(L1, L1 + 1, ER, TH, None, T0, T1)
    fill += cexp(L16, L16 + 1, ER, TH, f32hex(16.0), T0, T1)
    fill += cexp(L32, L32 + 1, ER, TH, f32hex(32.0), T0, T1)
    fill += cexp(L64, L64 + 1, ER, TH, f32hex(64.0), T0, T1)
    fill += [f"v_cvt_f32_u32 v{KQ}, v{vQ}", f"v_mul_f32 v{T2}, {f32hex(32.0)}, v{KQ}"]
    fill += cexp(MR, MI, ER, TH, f"v{T2}", T0, T1)
    fill += [f"v_add_f32 v{T2}, {f32hex(16.0)}, v{T2}"]
    fill += cexp(MR + 1, MI + 1, ER, TH, f"v{T2}", T0, T1)
    fill += [f"v_cmp_eq_u32 vcc, 3, v{vQ}", f"v_cndmask_b32 v{M3}, 1.0, v{L32}, vcc", f"v_cndmask_b32 v{M3+1}, 0, v{L32+1}, vcc"]
    fill += [f"v_mul_f32 v{T2}, {f32hex(512.0)}, v{KQ}"]
    for i in range(4):
        fill += cexp(WL + 2 * i, WL + 2 * i + 1, ER, TH, f"v{T2}", T0, T1)
        if i < 3: fill += [f"v_add_f32 v{T2}, {f32hex(128.0)}, v{T2}"]
    fill += [f"v_mul_f32 v{T0}, v{vLre}, v{vLre}", f"v_fma_f32 v{T0}, v{vLim}, v{vLim}, v{T0}", f"v_rcp_f32 v{T0}, v{T0}",
             f"v_add_f32 v{T1}, -1.0, v{L1}", f"v_add_f32 v{T0}, v{T0}, v{T0}",
             f"v_mul_f32 v{T2}, v{T1}, v{vLre}", f"v_mul_f32 v{T3}, v{L1+1}, v{vLre}",
             f"v_fma_f32 v{T2}, v{L1+1}, v{vLim}, v{T2}", f"v_fma_f32 v{T3}, -v{T1}, v{vLim}, v{T3}",
             f"v_mul_f32 v{CF}, v{T2}, v{T0}", f"v_mul_f32 v{CF+1}, v{T3}, v{T0}"]
    fill += cmul_pk(WT, CF, L1)
    for i in range(1, 16): fill += cmul_pk(WT + 2 * i, WT + 2 * i - 2, L1)
    RA, IA, F0, F1 = 64, 96, 128, 160
    def read_frags(step, ks, F):
        base = vA1 if ks else vA0
        for m in range(8):
            a(f"ds_read_b128 {vr(F+4*m,4)}, v{base} offset:{(step % 4)*16384 + m*2048}"); lg.issue(f"f{step}_{ks}")
    def mfmas(step, ks, F, nfill):
        for m in range(8):
            for ar_i in range(2):
                D = (IA if ar_i else RA) + 4 * m
                Cs = "0" if (step == 0 and ks == 0) else vr(D, 4)
                a(f"v_mfma_f32_16x16x32_bf16 {vr(D,4)}, {vr(F+4*m,4)}, {ar(16*step+8*ks+4*ar_i,4)}, {Cs}")
                for _ in range(nfill):
                    if fill: a(fill.pop(0))
    vm.wait("st0")
    a("s_barrier")
    a(f"s_lshl_b32 s{sT0}, s{sS}, 4")
    a(f"s_add_u32 s{sT1}, s{sT0}, s{sC}")
    a(f"v_mov_b32 v{vT}, s{sT1}")
    a(f"v_mov_b32 v{vT2}, 0x7fffffff")
    a(f"v_cmp_eq_u32 vcc, 0, v0")
    a(f"v_cndmask_b32 v{vT}, v{vT2}, v{vT}, vcc")
    a(f"v_mov_b32 v{vT2}, 1")
    a(f"buffer_store_byte v{vT2}, v{vT}, s[44:47], 0 offen sc1"); vm.issue("flag")
    a(f"v_add_u32 v{vFL}, s{sT0}, v{vPC}")
    read_frags(0, 0, F0)
    for step in range(9):
        read_frags(step, 1, F1) if False else None
        lgq = len(lg.q)
        lg.wait(f"f{step}_0")
        read_frags(step, 1, F1)
        if step + 7 < 9: issue_step(step + 7)
        mfmas(step, 0, F0, 1 if step >= 1 else 0)
        lg.wait(f"f{step}_1")
        if step < 8:
            vm.wait(f"st{step+1}")
            a("s_barrier")
            if (step + 1) % 4 == 0:
                a(f"v_add_u32 v{vA0}, 0x10000, v{vA0}")
                a(f"v_add_u32 v{vA1}, 0x10000, v{vA1}")
            read_frags(step + 1, 0, F0)
        if step == 7:
            a(f"buffer_load_ubyte v{vT}, v{vFL}, s[44:47], 0 offen sc1"); vm.issue("flg")
        mfmas(step, 1, F1, 1 if step >= 1 else 0)
    while fill: a(fill.pop(0))
    def pr(i): return RA + 4 * (i // 2) + 2 * (i % 2)
    def pi(i): return IA + 4 * (i // 2) + 2 * (i % 2)
    for i in range(1, 16):
        a(pk_fma_b(pr(i), pr(i - 1), L1, False, pr(i)))
        a(pk_fma_b(pi(i), pi(i - 1), L1, False, pi(i)))
        a(pk_fma_b(pr(i), pi(i - 1), L1, True, pr(i), neg=True))
        a(pk_fma_b(pi(i), pr(i - 1), L1, True, pi(i)))
    a0r, a0i, a1r, a1i = pr(15), pi(15), pr(15) + 1, pi(15) + 1
    AR, AI, ZR, ZI, TR, TI, YR, YI, Z2R, Z2I, SR, SI = 40, 41, 42, 43, 44, 45, 46, 47, 48, 49, 50, 51
    EPR, EPI = 52, 54
    for s in cfma(AR, AI, L16, L16 + 1, a0r, a0i, a1r, a1i): a(s)
    a(f"v_mov_b32 v{ZR}, 0"); a(f"v_mov_b32 v{ZI}, 0")
    a(f"v_mov_b32 v{Z2R}, 0"); a(f"v_mov_b32 v{Z2I}, 0")
    a(f"v_mov_b32 v{TR}, v{AR}"); a(f"v_mov_b32 v{TI}, v{AI}")
    a(f"v_permlane16_swap_b32 v{ZR}, v{TR}"); a(f"v_permlane16_swap_b32 v{ZI}, v{TI}")
    for s in cfma(YR, YI, L32, L32 + 1, ZR, ZI, AR, AI): a(s)
    a(f"v_mov_b32 v{TR}, v{YR}"); a(f"v_mov_b32 v{TI}, v{YI}")
    a(f"v_permlane16_swap_b32 v{TR}, v{YR}"); a(f"v_permlane16_swap_b32 v{TI}, v{YI}")
    a(f"v_permlane32_swap_b32 v{Z2R}, v{YR}"); a(f"v_permlane32_swap_b32 v{Z2I}, v{YI}")
    for s in cfma(SR, SI, L64, L64 + 1, Z2R, Z2I, YR, YI): a(s)
    a(f"v_and_b32 v{SR}, -2, v{SR}"); a(f"v_and_b32 v{SI}, -2, v{SI}")
    a(f"buffer_store_dwordx2 v[{SR}:{SI}], v{vSO}, s[40:43], 0 offen sc1"); vm.issue("pub")
    for s in cfma(EPR, EPI, M3, M3 + 1, Z2R, Z2I, ZR, ZI): a(s)
    for s in cfma(EPR + 1, EPI + 1, L16, L16 + 1, EPR, EPI, a0r, a0i): a(s)
    RN = F0
    def pn(i): return RN + 4 * (i // 2) + 2 * (i % 2)
    for i in range(16):
        a(pk_mul_b(pn(i), pr(i), CF, False))
        a(pk_fma_b(pn(i), pi(i), CF, True, pn(i), neg=True))
        a(pk_mul_b(pi(i), pi(i), CF, False, neg=True))
        a(pk_fma_b(pi(i), pr(i), CF, True, pi(i), neg=True))
    vm.wait("flg")
    a.label(f"{name}_fl")
    a(f"v_cmp_ne_u32 vcc, 0, v{vT}")
    a(f"v_cmp_le_u32 s[60:61], s{sC}, v{vPC}")
    a(f"s_or_b64 vcc, vcc, s[60:61]")
    a(f"s_cmp_eq_u64 vcc, exec")
    a(f"s_cbranch_scc1 {name}_fl_ok")
    a(f"s_sleep 2")
    a(f"buffer_load_ubyte v{vT}, v{vFL}, s[44:47], 0 offen sc1")
    a("s_waitcnt vmcnt(0)")
    a(f"s_branch {name}_fl")
    a.label(f"{name}_fl_ok")
    SL = F1
    LOi = F1 + 8
    for i in range(4):
        a(f"v_subrev_u32 v{LOi+i}, {(i+1)*4608}, v{vLO}")
    a.label(f"{name}_poll")
    for i in range(4):
        a(f"buffer_load_dwordx2 {vr(SL+2*i,2)}, v{LOi+i}, s[40:43], 0 offen sc1")
    a("s_waitcnt vmcnt(0)"); vm.q = []
    a(f"v_max_u32 v{TR}, v{SL}, v{SL+1}")
    a(f"v_max3_u32 v{TR}, v{SL+2}, v{SL+3}, v{TR}")
    a(f"v_max3_u32 v{TI}, v{SL+4}, v{SL+5}, v{SL+6}")
    a(f"v_max3_u32 v{TR}, v{SL+7}, v{TI}, v{TR}")
    a(f"v_cmp_eq_u32 vcc, -1, v{TR}")
    a(f"s_cmp_lg_u64 vcc, 0")
    a(f"s_cbranch_scc1 {name}_poll")
    HR, HI = 56, 57
    a(f"v_mul_f32 v{HR}, v{WL}, v{SL}")
    a(f"v_mul_f32 v{HI}, v{WL}, v{SL+1}")
    a(f"v_fma_f32 v{HR}, -v{WL+1}, v{SL+1}, v{HR}")
    a(f"v_fma_f32 v{HI}, v{WL+1}, v{SL}, v{HI}")
    for i in range(1, 4):
        for s in cfma(HR, HI, WL + 2 * i, WL + 2 * i + 1, SL + 2 * i, SL + 2 * i + 1, HR, HI): a(s)
    for sw in ("16", "32"):
        a(f"v_mov_b32 v{TR}, v{HR}"); a(f"v_mov_b32 v{TI}, v{HI}")
        a(f"v_permlane{sw}_swap_b32 v{TR}, v{HR}"); a(f"v_permlane{sw}_swap_b32 v{TI}, v{HI}")
        a(f"v_add_f32 v{HR}, v{HR}, v{TR}"); a(f"v_add_f32 v{HI}, v{HI}, v{TI}")
    a(pk_fma_b(EPR, MR, HR, False, EPR))
    a(pk_fma_b(EPI, MR, HR, True, EPI))
    a(pk_fma_b(EPR, MI, HR, True, EPR, neg=True))
    a(pk_fma_b(EPI, MI, HR, False, EPI))
    a(f"s_mul_i32 s{sT0}, s{sC}, {2*36*4096}")
    a(f"s_lshl_b32 s{sT1}, s{sPG}, 12")
    a(f"s_add_u32 s{sT0}, s{sT0}, s{sT1}")
    a(f"s_add_u32 s{sT1}, s{sT0}, {36*4096}")
    PK = RA
    for half in range(2):
        for i in range(8 * half, 8 * half + 8):
            w = WT + 2 * i
            a(pk_fma_b(pn(i), EPR, w, False, pn(i)))
            a(pk_fma_b(pi(i), EPI, w, False, pi(i), neg=True))
            a(pk_fma_b(pn(i), EPI, w, True, pn(i), neg=True))
            a(pk_fma_b(pi(i), EPR, w, True, pi(i), neg=True))
        for arr, base in ((0, RN), (1, IA)):
            for sub in range(2):
                ist = 2 * sub + half
                d = PK + 16 * arr + 4 * ist
                for mm in range(4):
                    m = 4 * half + mm
                    a(f"v_cvt_pk_bf16_f32 v{d+mm}, v{base+4*m+sub}, v{base+4*m+2+sub}")
                a(f"buffer_store_dwordx4 {vr(d,4)}, v{vHO}, s[36:39], s{sT1 if arr else sT0} offen offset:{ist*1024}")
    a.label(f"{name}_end")
    a("s_endpgm")
    return dict(vgpr=400, accum=256, sgpr=64)

def gen_a2(a, name):
    vm = Ctr(a, "vmcnt", 63); lg = Ctr(a, "lgkmcnt", 15)
    a(f"s_cmp_ge_u32 s2, 144")
    a(f"s_cbranch_scc1 {name}_end")
    a("s_load_dwordx2 s[4:5], s[0:1], 0")
    a("s_load_dwordx4 s[8:11], s[0:1], 40")
    a("s_load_dwordx2 s[6:7], s[0:1], 64")
    a("s_load_dwordx2 s[12:13], s[0:1], 128")
    a("s_load_dwordx2 s[14:15], s[0:1], 144")
    sC, sS, sW, sPP, sHB, sCB, sT0, sT1, sLB, sKH, sDH, sD0 = range(48, 60)
    a(f"s_and_b32 s{sC}, s2, 7")
    a(f"s_lshl_b32 s{sC}, s{sC}, 1")
    a(f"s_lshr_b32 s{sS}, s2, 3")
    a(f"s_cmp_ge_u32 s{sS}, 9")
    a(f"s_cselect_b32 s{sT0}, 1, 0")
    a(f"s_add_u32 s{sC}, s{sC}, s{sT0}")
    a(f"s_mul_i32 s{sT1}, s{sT0}, 9")
    a(f"s_sub_u32 s{sS}, s{sS}, s{sT1}")
    a(f"s_lshl_b32 s{sPP}, s{sS}, 1")
    a(f"s_add_u32 s{sPP}, s{sPP}, s{sT1}")
    a(f"s_cmp_ge_u32 s{sPP}, 18")
    a(f"s_cselect_b32 s{sT0}, 18, 0")
    a(f"s_sub_u32 s{sPP}, s{sPP}, s{sT0}")
    vL, vN, vQ, vDM, vCO, vR0, vR1, vT, vT2, vXO, vOO, vRW, vRR = range(1, 14)
    a(f"v_lshrrev_b32 v{vT}, 6, v0")
    a(f"v_and_b32 v{vL}, 63, v0")
    a(f"v_readfirstlane_b32 s{sW}, v{vT}")
    a(f"v_and_b32 v{vN}, 15, v0")
    a(f"v_lshrrev_b32 v{vQ}, 4, v{vL}")
    a(f"v_lshlrev_b32 v{vDM}, 4, v{vL}")
    a(f"s_lshr_b32 s{sKH}, s{sW}, 1")
    a(f"s_and_b32 s{sDH}, s{sW}, 1")
    a(f"v_mul_u32_u24 v{vCO}, 1152, v{vN}")
    a(f"v_lshl_add_u32 v{vCO}, v{vQ}, 4, v{vCO}")
    a(f"v_and_b32 v{vT}, 1, v{vQ}")
    a(f"v_mul_u32_u24 v{vT}, 12, v{vT}")
    a(f"v_lshrrev_b32 v{vT2}, 2, v{vN}")
    a(f"v_add_u32 v{vT}, v{vT}, v{vT2}")
    a(f"v_lshlrev_b32 v{vR0}, 5, v{vT}")
    a(f"v_and_b32 v{vT}, 3, v{vN}")
    a(f"v_lshl_add_u32 v{vR0}, v{vT}, 3, v{vR0}")
    a(f"v_lshrrev_b32 v{vT}, 1, v{vQ}")
    a(f"v_lshl_add_u32 v{vR0}, v{vT}, 12, v{vR0}")
    a(f"s_lshl_b32 s{sT0}, s{sKH}, 13")
    a(f"v_add_u32 v{vR0}, s{sT0}, v{vR0}")
    a(f"v_xor_b32 v{vR1}, 128, v{vR0}")
    a(f"v_lshrrev_b32 v{vT}, 3, v{vN}")
    a(f"v_lshlrev_b32 v{vT}, 5, v{vT}")
    a(f"v_and_b32 v{vT2}, 7, v{vN}")
    a(f"v_add_u32 v{vT}, v{vT}, v{vT2}")
    a(f"s_lshl_b32 s{sT0}, s{sC}, 7")
    a(f"s_lshl_b32 s{sT1}, s{sKH}, 6")
    a(f"s_add_u32 s{sT0}, s{sT0}, s{sT1}")
    a(f"v_add_u32 v{vT}, s{sT0}, v{vT}")
    a(f"s_lshl_b32 s{sD0}, s{sS}, 6")
    a(f"s_lshl_b32 s{sT1}, s{sDH}, 5")
    a(f"s_add_u32 s{sD0}, s{sD0}, s{sT1}")
    a(f"v_lshl_add_u32 v{vT2}, v{vQ}, 2, s{sD0}")
    a(f"v_mul_u32_u24 v{vXO}, 1152, v{vT}")
    a(f"v_lshl_add_u32 v{vXO}, v{vT2}, 1, v{vXO}")
    a(f"v_mul_u32_u24 v{vOO}, 4608, v{vT}")
    a(f"v_lshl_add_u32 v{vOO}, v{vT2}, 2, v{vOO}")
    a(f"v_lshlrev_b32 v{vT2}, 1, v{vT2}")
    a(f"s_lshl_b32 s{sT0}, s{sW}, 13")
    a(f"v_add_u32 v{vRR}, s{sT0}, v{vDM}")
    a(f"v_xor_b32 v{vRW}, 0x4000, v{vRR}")
    a(f"s_mul_i32 s{sHB}, s{sC}, {2*36*4096}")
    a(f"s_mul_i32 s{sT0}, s{sKH}, {36*4096}")
    a(f"s_add_u32 s{sHB}, s{sHB}, s{sT0}")
    a(f"s_lshl_b32 s{sT0}, s{sDH}, 12")
    a(f"s_add_u32 s{sHB}, s{sHB}, s{sT0}")
    a(f"s_mul_i32 s{sCB}, s{sD0}, 1152")
    a(f"s_lshl_b32 s{sLB}, s{sW}, 12")
    a("s_waitcnt lgkmcnt(0)")
    srd(a, 24, 4, 2048 * 1152)
    a(f"s_cmp_eq_u32 s{sKH}, 0")
    a(f"s_cselect_b32 s28, s8, s10")
    a(f"s_cselect_b32 s29, s9, s11")
    a(f"s_mov_b32 s30, {576*1152}")
    a(f"s_mov_b32 s31, 0x00020000")
    srd(a, 32, 12, 2048 * 4608)
    srd(a, 36, 14, H_BYTES, WS_H)
    XS, DS = 16, 32
    for mt in range(2):
        a(f"global_load_dwordx2 {vr(DS+2*mt,2)}, v{vT2}, s[6:7] offset:{32*mt}"); vm.issue("sk")
    for ist in range(4):
        a(f"s_mov_b32 s{sT0}, {ist*8*1152}")
        for mt in range(2):
            a(f"buffer_load_dwordx2 {vr(XS+2*(4*mt+ist),2)}, v{vXO}, s[24:27], s{sT0} offen offset:{32*mt}"); vm.issue("sk")
    NS = 8
    def issue_stage(st):
        a(f"s_lshl_b32 s{sT0}, s{sPP}, 13")
        a(f"s_add_u32 s{sT0}, s{sT0}, s{sHB}")
        a(f"s_add_u32 m0, s{sLB}, {(st % NS)*16384}")
        for e in range(4):
            a(f"buffer_load_dwordx4 v{vDM}, s[36:39], s{sT0} offen offset:{e*1024} lds"); vm.issue(f"st{st}")
        a(f"s_lshl_b32 s{sT0}, s{sPP}, 6")
        a(f"s_add_u32 s{sT0}, s{sT0}, s{sCB}")
        a(f"s_add_u32 s{sT1}, s{sT0}, {16*1152}")
        for mt in range(2):
            a(f"buffer_load_dwordx4 {ar(8*st+4*mt,4)}, v{vCO}, s[28:31], s{sT1 if mt else sT0} offen"); vm.issue(f"st{st}")
        a(f"s_add_u32 s{sPP}, s{sPP}, 1")
        a(f"s_cmp_ge_u32 s{sPP}, 18")
        a(f"s_cselect_b32 s{sPP}, 0, s{sPP}")
    for st in range(NS): issue_stage(st)
    ACC = 64
    def acc(nt, mt): return ACC + 8 * nt + 4 * mt
    SK = 128
    vm.wait("sk")
    for mt in range(2):
        a(f"v_lshlrev_b32 v{36+4*mt}, 16, v{DS+2*mt}")
        a(f"v_and_b32 v{37+4*mt}, 0xffff0000, v{DS+2*mt}")
        a(f"v_lshlrev_b32 v{38+4*mt}, 16, v{DS+2*mt+1}")
        a(f"v_and_b32 v{39+4*mt}, 0xffff0000, v{DS+2*mt+1}")
    for ist in range(4):
        for mt in range(2):
            x = XS + 2 * (4 * mt + ist); d = SK + 8 * ist + 4 * mt
            a(f"v_lshlrev_b32 v{d}, 16, v{x}")
            a(f"v_and_b32 v{d+1}, 0xffff0000, v{x}")
            a(f"v_lshlrev_b32 v{d+2}, 16, v{x+1}")
            a(f"v_and_b32 v{d+3}, 0xffff0000, v{x+1}")
            a(f"v_pk_mul_f32 {vr(d,2)}, {vr(d,2)}, {vr(36+4*mt,2)}")
            a(f"v_pk_mul_f32 {vr(d+2,2)}, {vr(d+2,2)}, {vr(38+4*mt,2)}")
            for r in range(4):
                a(f"v_cvt_pk_bf16_f32 v{d+r}, 0, v{d+r}")
    F = [160, 192]
    def read_frags(st, qh, Fb):
        slot = st % NS
        for ist in range(4):
            off = (slot % 4) * 16384 + ist * 1024 + qh * 512
            a(f"ds_read_b64_tr_b16 {vr(Fb+4*ist,2)}, v{vR0} offset:{off}"); lg.issue(f"f{st}_{qh}")
            a(f"ds_read_b64_tr_b16 {vr(Fb+4*ist+2,2)}, v{vR1} offset:{off}"); lg.issue(f"f{st}_{qh}")
    def mfmas(st, qh, Fb):
        for ist in range(4):
            for mt in range(2):
                D = acc(4 * qh + ist, mt)
                Cs = "0" if st == 0 else vr(D, 4)
                a(f"v_mfma_f32_16x16x32_bf16 {vr(D,4)}, {ar(8*st+4*mt,4)}, {vr(Fb+4*ist,4)}, {Cs}")
    vm.wait("st0")
    a("s_barrier")
    read_frags(0, 0, F[0])
    for st in range(18):
        lg.wait(f"f{st}_0")
        read_frags(st, 1, F[1])
        mfmas(st, 0, F[0])
        lg.wait(f"f{st}_1")
        if st < 17:
            vm.wait(f"st{st+1}")
            a("s_barrier")
            if (st + 1) % 4 == 0:
                a(f"v_xor_b32 v{vR0}, 0x10000, v{vR0}")
                a(f"v_xor_b32 v{vR1}, 0x10000, v{vR1}")
            read_frags(st + 1, 0, F[0])
            if st + NS < 18: issue_stage(st + NS)
        mfmas(st, 1, F[1])
    a("s_barrier")
    a(f"s_cmp_eq_u32 s{sKH}, 0")
    a.fence()
    a(f"s_cbranch_scc1 {name}_k0")
    def red(keep):
        send = 1 - keep
        for j in range(8):
            a(f"ds_write_b128 v{vRW}, {vr(ACC+32*send+4*j,4)} offset:{j*1024}")
        for j in range(16):
            a(f"v_pk_add_f32 {vr(SK+2*j,2)}, {vr(SK+2*j,2)}, {vr(ACC+32*keep+2*j,2)}")
    red(1)
    a(f"s_branch {name}_k1")
    a.label(f"{name}_k0")
    red(0)
    a.label(f"{name}_k1")
    a("s_waitcnt lgkmcnt(0)")
    a("s_barrier")
    RB = 160
    for j in range(8):
        a(f"ds_read_b128 {vr(RB+4*j,4)}, v{vRR} offset:{j*1024}")
    for j in range(8):
        ist, mt = j // 2, j % 2
        a(f"s_waitcnt lgkmcnt({7-j})")
        a(f"v_pk_add_f32 {vr(SK+4*j,2)}, {vr(SK+4*j,2)}, {vr(RB+4*j,2)}")
        a(f"v_pk_add_f32 {vr(SK+4*j+2,2)}, {vr(SK+4*j+2,2)}, {vr(RB+4*j+2,2)}")
        if mt == 0: a(f"s_mov_b32 s{sT0}, {ist*8*4608}")
        a(f"buffer_store_dwordx4 {vr(SK+4*j,4)}, v{vOO}, s[32:35], s{sT0} offen offset:{64*mt}")
    a.label(f"{name}_end")
    a("s_endpgm")
    return dict(vgpr=400, accum=256, sgpr=64)

def kd(name, info):
    return f""".p2align 6
.amdhsa_kernel {name}
  .amdhsa_next_free_vgpr {info['vgpr']}
  .amdhsa_next_free_sgpr {info['sgpr']}
  .amdhsa_accum_offset {info['accum']}
  .amdhsa_group_segment_fixed_size 0
  .amdhsa_kernarg_size 152
  .amdhsa_user_sgpr_count 2
  .amdhsa_user_sgpr_kernarg_segment_ptr 1
  .amdhsa_system_sgpr_workgroup_id_x 1
  .amdhsa_float_denorm_mode_32 3
.end_amdhsa_kernel
"""

def build(kernels, path):
    hdr = ""
    body = '.amdgcn_target "amdgcn-amd-amdhsa--gfx950"\n.text\n'
    kds = '.section .rodata,"a"\n'
    seen = set()
    for name, fn, grid, block, lds in kernels:
        hdr += f"; @launch kernel={name} grid=({grid},1,1) block=({block},1,1) lds={lds}\n"
        if name in seen: continue
        seen.add(name)
        a = Asm()
        info = fn(a, name)
        body += f".globl {name}\n.p2align 8\n.type {name},@function\n{name}:\n" + a.text()
        kds += kd(name, info)
        print(name, "instrs", a.count, "nops", a.nops)
    open(path, "w").write(hdr + body + kds)

if __name__ == "__main__":
    build([("a1_kernel", gen_a1, 144, 256, 147456), ("a2_kernel", gen_a2, 144, 256, 131072)], "k.s")
```

```python
from gen import *

U_ST, U_CH = 4160, 16640
K_BASE, K_CH = 66560, 4608
T_BASE, T_CH, T_ROW = 84992, 18432, 288
B_LDS = T_BASE + 4 * T_CH
OUT_ST = 4096 + 32

def xrows():
    def rb(j):
        import numpy as np
        x = np.float32(j); u = x.view(np.uint32); r = np.uint32((u + 0x7FFF + ((u >> 16) & 1)) & 0xFFFF0000)
        return int(r.view(np.float32))
    tiles = []
    tiles.append([i for i in range(16)])
    tiles.append([rb(256 + i) for i in range(16)])
    t2 = []
    for q in range(4):
        n = 2 + q // 2; h = q % 2
        t2 += [256 * n + 8 * h + 0, 256 * n + 8 * h + 4, 256 * n + 8 * h + 8, 256 * n + 8 * h + 8]
    tiles.append(t2)
    t3 = []
    for q in range(4):
        n = 4 + q
        t3 += [256 * n, 256 * n + 8, 256 * n + 16, 256 * n + 16]
    tiles.append(t3)
    ex = sorted(set(sum(tiles, [])))
    return ex, tiles

def gen_b(a, name, nwg=72):
    vm = Ctr(a, "vmcnt", 63); lg = Ctr(a, "lgkmcnt", 15)
    ex, tiles = xrows()
    assert len(ex) == 47
    rowidx = {e: i for i, e in enumerate(ex)}
    a(f"s_cmp_ge_u32 s2, {nwg}")
    a(f"s_cbranch_scc1 {name}_end")
    a("s_load_dwordx16 s[4:19], s[0:1], 72")
    sG, sW, sT0, sT1, sCH = 48, 49, 50, 51, 52
    a(f"s_and_b32 s{sG}, s2, 7")
    a(f"s_mul_i32 s{sG}, s{sG}, 9")
    a(f"s_lshr_b32 s{sT0}, s2, 3")
    a(f"s_add_u32 s{sG}, s{sG}, s{sT0}")
    vL, vI, vQ, vT, vT2, vUO, vPO, vTW, vUW, vAR, vBR, vKW, vPR, vXA = range(1, 15)
    a(f"v_lshrrev_b32 v{vT}, 6, v0")
    a(f"v_and_b32 v{vL}, 63, v0")
    a(f"v_readfirstlane_b32 s{sW}, v{vT}")
    a(f"v_and_b32 v{vI}, 15, v0")
    a(f"v_lshrrev_b32 v{vQ}, 4, v{vL}")
    a(f"v_mul_u32_u24 v{vUO}, {8*1152}, v0")
    a(f"s_lshl_b32 s{sT0}, s{sG}, 4")
    a(f"v_add_u32 v{vUO}, s{sT0}, v{vUO}")
    a(f"v_subrev_u32 v{vT}, {3*1152}, v{vUO}")
    a(f"v_mov_b32 v{vT2}, 0x7fffffff")
    a(f"v_cmp_eq_u32 vcc, 0, v0")
    a(f"v_cndmask_b32 v{vT}, v{vT}, v{vT2}, vcc")
    a(f"s_lshl_b32 s{sCH}, s{sG}, 3")
    a(f"s_add_u32 s{sCH}, s{sCH}, s{sW}")
    a(f"s_lshl_b32 s{sT0}, s{sCH}, 8")
    a(f"v_lshl_add_u32 v{vPO}, v{vL}, 2, s{sT0}")
    a(f"s_lshl_b32 s{sT0}, s{sCH}, 1")
    a(f"v_mov_b32 v{vT2}, s{sT0}")
    a("s_waitcnt lgkmcnt(0)")
    srd(a, 24, 4, 2048 * 1152)
    srd(a, 28, 18, 2048 * 4608)
    PAR = 20
    for r in range(2):
        for k in range(4):
            a(f"global_load_dword v{PAR+4*r+k}, v{vPO}, s[{6+2*k}:{7+2*k}] offset:{1024*r}"); vm.issue(f"par{r}")
        a(f"global_load_ushort v{28+r}, v{vT2}, s[14:15] offset:{8*r}"); vm.issue(f"par{r}")
        a(f"global_load_ushort v{30+r}, v{vT2}, s[16:17] offset:{8*r}"); vm.issue(f"par{r}")
    UR = 32
    for i in range(3):
        a(f"buffer_load_dwordx4 {vr(UR+4*i,4)}, v{vT}, s[24:27], 0 offen offset:{i*1152}"); vm.issue("u")
    for i in range(8):
        if i % 4 == 0: a(f"s_mov_b32 s{sT0}, {i*1152}")
        a(f"buffer_load_dwordx4 {vr(UR+12+4*i,4)}, v{vUO}, s[24:27], s{sT0} offen offset:{(i%4)*1152}"); vm.issue("u")
    a(f"s_mul_i32 s{sT0}, s{sW}, {T_CH}")
    a(f"s_add_u32 s{sT0}, s{sT0}, {T_BASE}")
    a(f"v_lshl_add_u32 v{vTW}, v{vL}, 2, s{sT0}")
    a(f"v_lshl_add_u32 v{vT}, v{vQ}, 4, s{sT0}")
    a(f"v_mul_u32_u24 v{vT2}, {T_ROW}, v{vI}")
    a(f"v_add_u32 v{vXA}, v{vT}, v{vT2}")
    a(f"v_add_u32 v{vXA+4}, {47*T_ROW}, v{vXA}")
    for t in (1, 2, 3):
        rows = [rowidx[e] for e in tiles[t]]
        b = min(rows); nib = [r - b for r in rows]; assert max(nib) < 16
        lo = sum(nib[i] << (4 * i) for i in range(8)); hi = sum(nib[8 + i] << (4 * i) for i in range(8))
        a(f"v_mov_b32 v{vXA+t}, {lo:#x}")
        a(f"v_mov_b32 v{vT2}, {hi:#x}")
        a(f"v_cmp_gt_u32 vcc, 8, v{vI}")
        a(f"v_cndmask_b32 v{vXA+t}, v{vT2}, v{vXA+t}, vcc")
        a(f"v_lshlrev_b32 v{vT2}, 2, v{vI}")
        a(f"v_and_b32 v{vT2}, 31, v{vT2}")
        a(f"v_bfe_u32 v{vXA+t}, v{vXA+t}, v{vT2}, 4")
        a(f"v_add_u32 v{vXA+t}, {b}, v{vXA+t}")
        a(f"v_mul_u32_u24 v{vXA+t}, {T_ROW}, v{vXA+t}")
        a(f"v_add_u32 v{vXA+t}, v{vXA+t}, v{vT}")
    a(f"v_lshlrev_b32 v{vUW}, 4, v0")
    a(f"v_add_u32 v{vUW}, 32, v{vUW}")
    a(f"v_sub_u32 v{vT}, 3, v{vI}")
    a(f"v_and_b32 v{vT}, 3, v{vT}")
    a(f"v_add3_u32 v{vT2}, v{vI}, v{vT}, 1")
    a(f"v_lshl_add_u32 v{vT2}, v{vQ}, 3, v{vT2}")
    a(f"v_mul_u32_u24 v{vAR}, {U_ST}, v{vT}")
    a(f"v_lshl_add_u32 v{vAR}, v{vT2}, 1, v{vAR}")
    a(f"s_mul_i32 s{sT0}, s{sW}, {U_CH}")
    a(f"v_add_u32 v{vAR}, s{sT0}, v{vAR}")
    a(f"v_lshlrev_b32 v{vPR}, 5, v{vI}")
    a(f"v_lshl_add_u32 v{vPR}, v{vQ}, 3, v{vPR}")
    a(f"v_add_u32 v{vPR}, 32, v{vPR}")
    a(f"v_add_u32 v{vPR}, s{sT0}, v{vPR}")
    a(f"s_mul_i32 s{sT0}, s{sW}, {K_CH}")
    a(f"s_add_u32 s{sT0}, s{sT0}, {K_BASE}")
    a(f"v_lshlrev_b32 v{vT}, 5, v{vI}")
    a(f"v_sub_u32 v{vKW}, 480, v{vT}")
    a(f"v_add_u32 v{vKW}, s{sT0}, v{vKW}")
    a(f"v_lshl_add_u32 v{vBR}, v{vQ}, 4, v{vKW}")
    vK01, vK2, vK3 = 76, 77, 78
    a(f"v_lshlrev_b32 v{vT}, 3, v{vQ}")
    a(f"v_sub_u32 v{vK01}, v{vKW}, v{vT}")
    a(f"v_lshrrev_b32 v{vT}, 1, v{vQ}")
    a(f"v_lshlrev_b32 v{vT}, 9, v{vT}")
    a(f"v_and_b32 v{vT2}, 1, v{vQ}")
    a(f"v_lshl_add_u32 v{vT}, v{vT2}, 4, v{vT}")
    a(f"v_sub_u32 v{vK2}, v{vKW}, v{vT}")
    a(f"v_lshlrev_b32 v{vT}, 9, v{vQ}")
    a(f"v_sub_u32 v{vK3}, v{vKW}, v{vT}")
    Z = 80
    for i in range(4): a(f"v_mov_b32 v{Z+i}, 0")
    a(f"v_min_u32 v{vT}, 29, v{vL}")
    a(f"v_lshl_add_u32 v{vT}, v{vT}, 4, s{sT0}")
    a(f"ds_write_b128 v{vT}, {vr(Z,4)} offset:4096")
    a(f"v_and_b32 v{vT}, 1, v{vL}")
    a(f"v_lshlrev_b32 v{vT}, 4, v{vT}")
    a(f"v_bfe_u32 v{vT2}, v{vL}, 1, 2")
    a(f"v_mul_u32_u24 v{vT2}, {U_ST}, v{vT2}")
    a(f"s_mul_i32 s{sT1}, s{sW}, {U_CH}")
    a(f"v_add3_u32 v{vT}, v{vT}, v{vT2}, s{sT1}")
    a(f"ds_write_b128 v{vT}, {vr(Z,4)}")
    sSEL0, sSEL1 = 53, 54
    a(f"s_mov_b32 s{sSEL0}, 0x05040100")
    a(f"s_mov_b32 s{sSEL1}, 0x07060302")
    RES = 84

    def kgen(r):
        ER, TH, DT, T0, T1 = 116, 117, 118, 119, 120
        E1, E16, Q1, CC = 122, 124, 126, 128
        P = 130
        Q = 164
        TM = 180
        CV = 188
        KA = 196
        XF = 212
        vm.wait(f"par{r}")
        a(f"v_lshlrev_b32 v{DT}, 16, v{28+r}")
        a(f"v_mul_f32 v{DT}, {LOG2E}, v{DT}")
        a(f"v_exp_f32 v{DT}, v{DT}")
        a(f"v_cvt_pk_bf16_f32 v{DT}, 0, v{DT}")
        cvn = [0]
        for ps in range(2):
            def unp(d, s):
                if ps == 0: a(f"v_lshlrev_b32 v{d}, 16, v{s}")
                else: a(f"v_and_b32 v{d}, 0xffff0000, v{s}")
            def put(row, pair, neg=False):
                c = CV + cvn[0] % 8; cvn[0] += 1
                n = " neg_hi:[0,0]" if False else ""
                s1 = f"-v{pair+1}" if neg else f"v{pair+1}"
                a(f"v_cvt_pk_bf16_f32 v{c}, v{pair}, {s1}")
                a(f"ds_write_b32 v{vTW}, v{c} offset:{row*T_ROW}")
            unp(ER, PAR + 4 * r); unp(TH, PAR + 4 * r + 1); unp(CC, PAR + 4 * r + 2); unp(CC + 1, PAR + 4 * r + 3)
            a(f"v_mul_f32 v{ER}, {LOG2E}, v{ER}")
            a(f"v_exp_f32 v{ER}, v{ER}")
            a(f"v_mul_f32 v{TH}, v{TH}, v{DT}")
            a(f"v_cvt_pk_bf16_f32 v{ER}, 0, v{ER}")
            a(f"v_mul_f32 v{TH}, {INV2PI}, v{TH}")
            a(f"v_mul_f32 v{ER}, v{ER}, v{DT}")
            a(f"v_mul_f32 v{ER}, 0xbfb8aa3b, v{ER}")
            a(f"v_add_f32 v{T0}, v{DT}, v{DT}")
            a(f"v_mul_f32 v{CC}, v{CC}, v{T0}")
            a(f"v_mul_f32 v{CC+1}, v{CC+1}, v{T0}")
            for s in cexp(P + 2, P + 3, ER, TH, None, T0, T1): a(s)
            for s in cexp(P + 32, P + 33, ER, TH, f32hex(16.0), T0, T1): a(s)
            for s in cexp(Q + 2, Q + 3, ER, TH, f32hex(256.0), T0, T1): a(s)
            if ps == 1: lg.wait_all()
            a(f"v_mov_b32 v{T0}, 0x3f80")
            a(f"ds_write_b32 v{vTW}, v{T0} offset:{rowidx[0]*T_ROW}")
            put(rowidx[1], P + 2)
            for k in range(2, 16):
                for s in cmul_pk(P + 2 * k, P + 2 * k - 2, P + 2): a(s)
                put(rowidx[k], P + 2 * k)
            put(47, CC, neg=True)
            prev = CC
            for b in range(1, 16):
                d = TM + 2 * (b % 2)
                for s in cmul_pk(d, prev, P + 32): a(s)
                put(47 + b, d, neg=True); prev = d
            put(rowidx[256], Q + 2)
            for n in range(2, 8):
                for s in cmul_pk(Q + 2 * n, Q + 2 * n - 2, Q + 2): a(s)
                put(rowidx[256 * n], Q + 2 * n)
            cnt = 0
            for e in ex:
                if e > 256 and e % 256:
                    d = TM + 4 + 2 * (cnt % 2); cnt += 1
                    for s in cmul_pk(d, Q + 2 * (e // 256), P + 2 * (e % 256)): a(s)
                    put(rowidx[e], d)
            lg.wait_all()
            for ks in range(4):
                for t in range(5):
                    a(f"ds_read_b128 {vr(XF+4*t,4)}, v{vXA+t} offset:{ks*64}")
                lg.wait_all()
                for t in range(4):
                    Cs = "0" if (ps == 0 and ks == 0) else vr(KA + 4 * t, 4)
                    a(f"v_mfma_f32_16x16x32_bf16 {vr(KA+4*t,4)}, {vr(XF+4*t,4)}, {vr(XF+16,4)}, {Cs}")
        W = XF
        for t in range(2):
            k = KA + 4 * t
            a(f"v_cvt_pk_bf16_f32 v{W+2*t}, v{k+3}, v{k+2}")
            a(f"v_cvt_pk_bf16_f32 v{W+2*t+1}, v{k+1}, v{k}")
            a(f"ds_write_b64 v{vK01}, {vr(W+2*t,2)} offset:{2*(2044-240-256*t)}")
        k = KA + 8
        for j, (x, y) in enumerate(((2, 2), (1, 1), (1, 0), (0, 0))):
            a(f"v_cvt_pk_bf16_f32 v{W+4+j}, v{k+x}, v{k+y}")
        a(f"ds_write_b128 v{vK2}, {vr(W+4,4)} offset:{2*(2040-240-512)}")
        k = KA + 12
        for j, (x, y) in enumerate(((2, 2), (2, 2), (1, 1), (1, 1), (1, 1), (1, 0), (0, 0), (0, 0))):
            a(f"v_cvt_pk_bf16_f32 v{W+8+j}, v{k+x}, v{k+y}")
        a(f"ds_write_b128 v{vK3}, {vr(W+8,4)} offset:{2*(2032-240-1024)}")
        a(f"ds_write_b128 v{vK3}, {vr(W+12,4)} offset:{2*(2032-240-1024)+16}")

    def ucopies(r):
        TMP = 232
        vm.wait("u")
        for ch in range(4):
            dw = 2 * r + ch // 2; sel = sSEL1 if ch % 2 else sSEL0
            for s in range(4):
                d = TMP + 4 * s
                for j in range(4):
                    rho = -s + 2 * j
                    r0 = UR + 4 * (rho + 3) + dw; r1 = UR + 4 * (rho + 4) + dw
                    a(f"v_perm_b32 v{d+j}, v{r1}, v{r0}, s{sel}")
                a(f"ds_write_b128 v{vUW}, {vr(d,4)} offset:{ch*U_CH + s*U_ST}")

    def conv(r):
        ACC = 116
        AF = [148, 180]
        BF = 212
        for dp in range(8):
            A = AF[dp % 2]
            for m in range(8):
                off = 64 * (dp + 8 * m)
                a(f"ds_read_b128 {vr(BF+4*m,4)}, v{vBR} offset:{2*(1792-256*m)+64*dp}")
                if m == 6: a("s_waitcnt lgkmcnt(8)")
            for m in range(8):
                off = 64 * (dp + 8 * m)
                a(f"ds_read_b64 {vr(A+4*m,2)}, v{vAR} offset:{off}")
                a(f"ds_read_b64 {vr(A+4*m+2,2)}, v{vAR} offset:{off+8}")
                if m % 2 == 1: a("s_waitcnt lgkmcnt(8)")
            a("s_waitcnt lgkmcnt(0)")
            for m in range(8):
                for n1 in range(8 - m):
                    D = ACC + 4 * (n1 + m)
                    Cs = "0" if (dp == 0 and m == 0) else vr(D, 4)
                    a(f"v_mfma_f32_16x16x32_bf16 {vr(D,4)}, {vr(A+4*m,4)}, {vr(BF+4*n1,4)}, {Cs}")
        UU = 148; PP = 180; DD = 212
        for n in range(8):
            a(f"ds_read_b64 {vr(UU+2*n,2)}, v{vPR} offset:{512*n}")
        a(f"v_lshlrev_b32 v{DD}, 16, v{30+r}")
        a("s_waitcnt lgkmcnt(0)")
        for n in range(8):
            p = PP + 4 * n; u = UU + 2 * n; y = ACC + 4 * n
            a(f"v_lshlrev_b32 v{p}, 16, v{u}")
            a(f"v_and_b32 v{p+1}, 0xffff0000, v{u}")
            a(f"v_lshlrev_b32 v{p+2}, 16, v{u+1}")
            a(f"v_and_b32 v{p+3}, 0xffff0000, v{u+1}")
            a(pk_mul_b(p, p, DD, False)); a(pk_mul_b(p + 2, p + 2, DD, False))
            for k in range(4):
                a(f"v_cvt_pk_bf16_f32 v{p+k}, 0, v{p+k}")
                a(f"v_cvt_pk_bf16_f32 v{y+k}, 0, v{y+k}")
            a(f"v_pk_add_f32 {vr(p,2)}, {vr(p,2)}, {vr(y,2)}")
            a(f"v_pk_add_f32 {vr(p+2,2)}, {vr(p+2,2)}, {vr(y+2,2)}")
            a(f"v_cvt_pk_bf16_f32 v{RES+16*r+2*n}, v{p}, v{p+1}")
            a(f"v_cvt_pk_bf16_f32 v{RES+16*r+2*n+1}, v{p+2}, v{p+3}")

    for r in range(2):
        kgen(r)
        if r == 1: a("s_barrier")
        ucopies(r)
        a("s_waitcnt lgkmcnt(0)")
        a("s_barrier")
        conv(r)
    a("s_barrier")
    a(f"v_lshlrev_b32 v{vT}, 5, v{vI}")
    a(f"v_lshl_add_u32 v{vT}, v{vQ}, 3, v{vT}")
    a(f"s_mul_i32 s{sT0}, s{sW}, {OUT_ST}")
    a(f"v_add_u32 v{vT}, s{sT0}, v{vT}")
    for r in range(2):
        for n in range(8):
            a(f"ds_write_b64 v{vT}, {vr(RES+16*r+2*n,2)} offset:{4*r*OUT_ST + 512*n}")
        a("s_waitcnt lgkmcnt(0)")
    a("s_barrier")
    a(f"v_lshrrev_b32 v{vT}, 1, v0")
    a(f"v_and_b32 v{vT2}, 1, v0")
    a(f"v_mul_u32_u24 v{vAR}, {4*OUT_ST}, v{vT2}")
    a(f"v_lshl_add_u32 v{vAR}, v{vT}, 5, v{vAR}")
    a(f"v_mul_u32_u24 v{vUO}, {16*4608}, v{vT}")
    a(f"v_lshl_add_u32 v{vUO}, v{vT2}, 4, v{vUO}")
    a(f"s_lshl_b32 s{sT0}, s{sG}, 5")
    a(f"s_add_u32 s{sT0}, s{sT0}, 2304")
    RD = 116
    for ch in range(4):
        for h in range(2):
            a(f"ds_read_b128 {vr(RD+8*ch+4*h,4)}, v{vAR} offset:{ch*OUT_ST+16*h}")
    a("s_waitcnt lgkmcnt(0)")
    OD = 148
    for row in range(16):
        d = OD + 4 * row
        for ch in range(4):
            s = RD + 8 * ch + row // 2
            if row % 2 == 0: a(f"v_lshlrev_b32 v{d+ch}, 16, v{s}")
            else: a(f"v_and_b32 v{d+ch}, 0xffff0000, v{s}")
        a(f"buffer_store_dwordx4 {vr(d,4)}, v{vUO}, s[28:31], s{sT0} offen")
        if row < 15: a(f"s_add_u32 s{sT0}, s{sT0}, 4608")
    a.label(f"{name}_end")
    a("s_endpgm")
    return dict(vgpr=256, accum=256, sgpr=64)

if __name__ == "__main__":
    build([("b_kernel", gen_b, 72, 256, B_LDS), ("a1_kernel", gen_a1, 144, 256, 147456), ("a2_kernel", gen_a2, 144, 256, 131072)], "k.s")
```

```python
from genb import *
def gen_nop(a, name):
    a("s_endpgm")
    return dict(vgpr=8, accum=8, sgpr=16)
base = [("b_kernel", gen_b, 72, 256, B_LDS), ("a1_kernel", gen_a1, 144, 256, 147456), ("a2_kernel", gen_a2, 144, 256, 131072)]
build(base + [("nop_kernel", gen_nop, 256, 256, 0)], "k_nop1.s")
build(base + [("nop_kernel", gen_nop, 256, 256, 0)]*4, "k_nop4.s")
```

```python
import sys
sys.path.insert(0, "work")
from asmlib import *

LOG2E = "0x3fb8aa3b"
INV2PI = "0.15915494"
WS_H = 0
WS_S = 8 << 20
H_BYTES = 16 * 2 * 36 * 4096
S_BYTES = 16 * 576 * 8

STAMPS = False
WS_STAMP = 16 << 20
class Stamp:
    def __init__(self, a, kid):
        self.a = a; self.n = 0; self.kid = kid
    def __call__(self):
        if not STAMPS: return
        a = self.a
        a(f"s_memrealtime s[{64+2*self.n}:{65+2*self.n}]")
        a("s_waitcnt lgkmcnt(0)")
        self.n += 1
        assert self.n <= 16
    def dump(self, wgreg="s2"):
        if not STAMPS: return
        a = self.a
        a("s_waitcnt vmcnt(0)")
        self()
        a("s_load_dwordx2 s[96:97], s[0:1], 144")
        a("v_lshrrev_b32 v1, 6, v0")
        a(f"s_lshl_b32 s98, {wgreg}, 2")
        a("v_add_u32 v1, s98, v1")
        a("v_lshlrev_b32 v1, 6, v1")
        a(f"v_add_u32 v1, {WS_STAMP + self.kid*2048*64}, v1")
        a("s_waitcnt lgkmcnt(0)")
        for i in range(self.n):
            a(f"v_mov_b32 v2, s{64+2*i}")
            a(f"global_store_dword v1, v2, s[96:97] offset:{4*i}")
        a("s_getreg_b32 s98, hwreg(HW_REG_XCC_ID)")
        a("v_mov_b32 v2, s98")
        a(f"global_store_dword v1, v2, s[96:97] offset:60")

class Ctr:
    def __init__(self, a, name, mx):
        self.a = a; self.name = name; self.q = []; self.mx = mx
    def issue(self, tag):
        self.q.append(tag)
    def wait(self, tag):
        if tag not in self.q: return
        idx = max(i for i, t in enumerate(self.q) if t == tag)
        n = len(self.q) - 1 - idx
        if n > self.mx - 1:
            idx += n - (self.mx - 1); n = self.mx - 1
        self.a(f"s_waitcnt {self.name}({n})")
        self.q = self.q[idx + 1:]
    def wait_all(self):
        self.a(f"s_waitcnt {self.name}(0)"); self.q = []

def srd(a, d, base, nbytes, off=0):
    if off:
        a(f"s_add_u32 s{d}, s{base}, {off}")
        a(f"s_addc_u32 s{d+1}, s{base+1}, 0")
    else:
        a(f"s_mov_b32 s{d}, s{base}")
        a(f"s_mov_b32 s{d+1}, s{base+1}")
    a(f"s_mov_b32 s{d+2}, {nbytes}")
    a(f"s_mov_b32 s{d+3}, 0x00020000")

def cexp(dst_re, dst_im, er, th, k, t0, t1):
    o = []
    if k is None:
        o.append(f"v_exp_f32 v{t0}, v{er}")
        o.append(f"v_rndne_f32 v{dst_re}, v{th}")
        o.append(f"v_sub_f32 v{t1}, v{th}, v{dst_re}")
    else:
        o.append(f"v_mul_f32 v{t0}, {k}, v{er}")
        o.append(f"v_mul_f32 v{t1}, {k}, v{th}")
        o.append(f"v_exp_f32 v{t0}, v{t0}")
        o.append(f"v_rndne_f32 v{dst_re}, v{t1}")
        o.append(f"v_sub_f32 v{t1}, v{t1}, v{dst_re}")
    o.append(f"v_cos_f32 v{dst_re}, v{t1}")
    o.append(f"v_sin_f32 v{dst_im}, v{t1}")
    o.append(f"v_mul_f32 v{dst_re}, v{dst_re}, v{t0}")
    o.append(f"v_mul_f32 v{dst_im}, v{dst_im}, v{t0}")
    return o

def f32hex(x):
    import struct
    return "0x%08x" % struct.unpack("<I", struct.pack("<f", x))[0]

def cmul_pk(z, x, f):
    return [f"v_pk_mul_f32 {vr(z,2)}, {vr(x,2)}, {vr(f,2)} op_sel:[0,0] op_sel_hi:[1,0]",
            f"v_pk_fma_f32 {vr(z,2)}, {vr(x,2)}, {vr(f,2)}, {vr(z,2)} op_sel:[1,1,0] op_sel_hi:[0,1,1] neg_lo:[1,0,0]"]

def cfma(dr, di, fr, fi, xr, xi, ar_, ai_):
    return [f"v_fma_f32 v{dr}, v{fr}, v{xr}, v{ar_}",
            f"v_fma_f32 v{di}, v{fr}, v{xi}, v{ai_}",
            f"v_fma_f32 v{dr}, -v{fi}, v{xi}, v{dr}",
            f"v_fma_f32 v{di}, v{fi}, v{xr}, v{di}"]

def pk_fma_b(d, x, f, hi, c, neg=False):
    s = 1 if hi else 0
    n = " neg_lo:[0,1,0] neg_hi:[0,1,0]" if neg else ""
    return f"v_pk_fma_f32 {vr(d,2)}, {vr(x,2)}, {vr(f,2)}, {vr(c,2)} op_sel:[0,{s},0] op_sel_hi:[1,{s},1]{n}"
def pk_mul_b(d, x, f, hi, neg=False):
    s = 1 if hi else 0
    n = " neg_lo:[0,1] neg_hi:[0,1]" if neg else ""
    return f"v_pk_mul_f32 {vr(d,2)}, {vr(x,2)}, {vr(f,2)} op_sel:[0,{s}] op_sel_hi:[1,{s}]{n}"

def gen_a1(a, name):
    vm = Ctr(a, "vmcnt", 63); lg = Ctr(a, "lgkmcnt", 15)
    a(f"s_cmp_ge_u32 s2, 144")
    a(f"s_cbranch_scc1 {name}_end")
    st = Stamp(a, 1); st()
    a("s_load_dwordx16 s[4:19], s[0:1], 0")
    a("s_load_dwordx4 s[20:23], s[0:1], 136")
    sC, sS, sW, sKO, sXB, sBB, sT0, sT1, sLB = 48, 49, 50, 51, 52, 53, 54, 55, 56
    a(f"s_and_b32 s{sC}, s2, 7")
    a(f"s_lshl_b32 s{sC}, s{sC}, 1")
    a(f"s_lshr_b32 s{sS}, s2, 3")
    a(f"s_cmp_ge_u32 s{sS}, 9")
    a(f"s_cselect_b32 s{sT0}, 1, 0")
    a(f"s_add_u32 s{sC}, s{sC}, s{sT0}")
    a(f"s_mul_i32 s{sT1}, s{sT0}, 9")
    a(f"s_sub_u32 s{sS}, s{sS}, s{sT1}")
    a(f"s_lshl_b32 s{sT0}, s{sT0}, 2")
    a(f"s_add_u32 s{sKO}, s{sS}, s{sT0}")
    a(f"s_cmp_ge_u32 s{sKO}, 9")
    a(f"s_cselect_b32 s{sT0}, 9, 0")
    a(f"s_sub_u32 s{sKO}, s{sKO}, s{sT0}")
    a(f"s_lshl_b32 s{sKO}, s{sKO}, 7")
    vL, vPC, vQ, vD0, vD1, vBO, vA0, vA1, vT, vT2, vSO, vP2, vHO, vFL, vLO = range(1, 16)
    a(f"v_lshrrev_b32 v{vT}, 6, v0")
    a(f"v_and_b32 v{vL}, 63, v0")
    a(f"v_readfirstlane_b32 s{sW}, v{vT}")
    a(f"v_and_b32 v{vPC}, 15, v0")
    a(f"v_lshrrev_b32 v{vQ}, 4, v{vL}")
    a(f"v_lshrrev_b32 v{vT}, 5, v{vL}")
    a(f"v_lshlrev_b32 v{vD0}, 5, v{vT}")
    a(f"v_bfe_u32 v{vT}, v{vL}, 3, 1")
    a(f"v_lshl_add_u32 v{vD0}, v{vT}, 4, v{vD0}")
    a(f"v_bfe_u32 v{vT}, v{vL}, 4, 1")
    a(f"v_add_u32 v{vD0}, v{vD0}, v{vT}")
    a(f"v_mul_u32_u24 v{vD0}, 1152, v{vD0}")
    a(f"v_and_b32 v{vT}, 7, v{vL}")
    a(f"v_xor_b32 v{vT}, v{vT}, v{vQ}")
    a(f"v_xor_b32 v{vT2}, 4, v{vT}")
    a(f"v_lshl_add_u32 v{vD1}, v{vT2}, 4, v{vD0}")
    a(f"v_add_u32 v{vD1}, {64*1152}, v{vD1}")
    a(f"v_lshl_add_u32 v{vD0}, v{vT}, 4, v{vD0}")
    a(f"v_mul_u32_u24 v{vBO}, 1152, v{vPC}")
    a(f"v_lshl_add_u32 v{vBO}, v{vQ}, 4, v{vBO}")
    a(f"v_lshrrev_b32 v{vT}, 1, v{vPC}")
    a(f"v_xor_b32 v{vT}, v{vT}, v{vQ}")
    a(f"v_lshlrev_b32 v{vT}, 4, v{vT}")
    a(f"v_lshl_add_u32 v{vA0}, v{vPC}, 7, v{vT}")
    a(f"v_xor_b32 v{vA1}, 64, v{vA0}")
    a(f"s_mul_i32 s{sXB}, s{sC}, {128*1152}")
    a(f"s_mul_i32 s{sT0}, s{sW}, {4*1152}")
    a(f"s_add_u32 s{sXB}, s{sXB}, s{sT0}")
    a(f"s_lshl_b32 s{sT0}, s{sS}, 2")
    a(f"s_add_u32 s{sT0}, s{sT0}, s{sW}")
    sPG = 57
    a(f"s_mov_b32 s{sPG}, s{sT0}")
    a(f"s_mul_i32 s{sBB}, s{sT0}, {16*1152}")
    a(f"s_lshl_b32 s{sLB}, s{sW}, 12")
    a(f"s_lshl_b32 s{sT1}, s{sT0}, 4")
    a(f"v_add_u32 v{vT}, s{sT1}, v{vPC}")
    a(f"v_lshlrev_b32 v{vP2}, 1, v{vT}")
    a(f"s_mul_i32 s{sT1}, s{sC}, 576")
    a(f"v_add_u32 v{vT}, s{sT1}, v{vT}")
    a(f"v_lshlrev_b32 v{vSO}, 3, v{vT}")
    a(f"v_mul_u32_u24 v{vT}, {4*4608}, v{vQ}")
    a(f"v_sub_u32 v{vLO}, v{vSO}, v{vT}")
    a(f"v_cmp_eq_u32 vcc, 3, v{vQ}")
    a(f"v_mov_b32 v{vT}, 0x7fffffff")
    a(f"v_cndmask_b32 v{vSO}, v{vT}, v{vSO}, vcc")
    a(f"v_lshrrev_b32 v{vT}, 1, v{vPC}")
    a(f"v_and_b32 v{vT}, 4, v{vT}")
    a(f"v_xor_b32 v{vT}, v{vT}, v{vPC}")
    a(f"v_lshlrev_b32 v{vHO}, 5, v{vT}")
    a(f"v_lshrrev_b32 v{vT}, 1, v{vQ}")
    a(f"v_lshl_add_u32 v{vHO}, v{vT}, 9, v{vHO}")
    a(f"v_and_b32 v{vT}, 1, v{vQ}")
    a(f"v_lshl_add_u32 v{vHO}, v{vT}, 4, v{vHO}")
    a("s_waitcnt lgkmcnt(0)")
    srd(a, 24, 4, 2048 * 1152)
    srd(a, 28, 10, 576 * 1152)
    srd(a, 32, 12, 576 * 1152)
    srd(a, 36, 22, H_BYTES, WS_H)
    srd(a, 40, 22, S_BYTES, WS_S)
    srd(a, 44, 20, 256)
    vLre, vLim, vLdt = 40, 41, 42
    a("v_mov_b32 v44, -1")
    a("v_mov_b32 v45, -1")
    a(f"buffer_store_dwordx2 v[44:45], v{vSO}, s[40:43], 0 offen sc1"); vm.issue("clr")
    a(f"global_load_ushort v{vLre}, v{vP2}, s[6:7]"); vm.issue("par")
    a(f"global_load_ushort v{vLim}, v{vP2}, s[8:9]"); vm.issue("par")
    a(f"global_load_ushort v{vLdt}, v{vP2}, s[18:19]"); vm.issue("par")
    def issue_step(i):
        a(f"s_add_u32 s{sT0}, s{sXB}, s{sKO}")
        a(f"s_add_u32 s{sT1}, s{sT0}, 2304")
        for e in range(4):
            a(f"s_add_u32 m0, s{sLB}, {i*16384 + e*1024}")
            a(f"buffer_load_dwordx4 v{vD1 if e & 1 else vD0}, s[24:27], s{sT1 if e >> 1 else sT0} offen lds"); vm.issue(f"st{i}")
        a(f"s_add_u32 s{sT0}, s{sBB}, s{sKO}")
        for ks in range(2):
            for ar_i in range(2):
                r = 16 * i + 8 * ks + 4 * ar_i
                a(f"buffer_load_dwordx4 {ar(r,4)}, v{vBO}, s[{28+4*ar_i}:{31+4*ar_i}], s{sT0} offen offset:{64*ks}"); vm.issue(f"st{i}")
        a(f"s_add_u32 s{sKO}, s{sKO}, 128")
        a(f"s_cmp_ge_u32 s{sKO}, 1152")
        a(f"s_cselect_b32 s{sKO}, 0, s{sKO}")
    st()
    for i in range(7): issue_step(i)
    st()
    L1, L16, L32, L64, MR, MI, M3, WL, CF = 16, 18, 20, 22, 24, 26, 28, 30, 38
    ER, TH, T0, T1, T2, T3, KQ = 46, 47, 48, 49, 50, 51, 52
    WT = 192
    fill = []
    fill += [f"v_lshlrev_b32 v{vLre}, 16, v{vLre}", f"v_lshlrev_b32 v{vLim}, 16, v{vLim}", f"v_lshlrev_b32 v{vLdt}, 16, v{vLdt}",
             f"v_mul_f32 v{vLdt}, {LOG2E}, v{vLdt}", f"v_exp_f32 v{vLdt}, v{vLdt}", f"v_cvt_pk_bf16_f32 v{vLdt}, 0, v{vLdt}",
             f"v_mul_f32 v{ER}, v{vLdt}, v{vLre}", f"v_mul_f32 v{TH}, v{vLdt}, v{vLim}",
             f"v_mul_f32 v{ER}, {LOG2E}, v{ER}", f"v_mul_f32 v{TH}, {INV2PI}, v{TH}"]
    fill += cexp(L1, L1 + 1, ER, TH, None, T0, T1)
    fill += cexp(L16, L16 + 1, ER, TH, f32hex(16.0), T0, T1)
    fill += cexp(L32, L32 + 1, ER, TH, f32hex(32.0), T0, T1)
    fill += cexp(L64, L64 + 1, ER, TH, f32hex(64.0), T0, T1)
    fill += [f"v_cvt_f32_u32 v{KQ}, v{vQ}", f"v_mul_f32 v{T2}, {f32hex(32.0)}, v{KQ}"]
    fill += cexp(MR, MI, ER, TH, f"v{T2}", T0, T1)
    fill += [f"v_add_f32 v{T2}, {f32hex(16.0)}, v{T2}"]
    fill += cexp(MR + 1, MI + 1, ER, TH, f"v{T2}", T0, T1)
    fill += [f"v_cmp_eq_u32 vcc, 3, v{vQ}", f"v_cndmask_b32 v{M3}, 1.0, v{L32}, vcc", f"v_cndmask_b32 v{M3+1}, 0, v{L32+1}, vcc"]
    fill += [f"v_mul_f32 v{T2}, {f32hex(512.0)}, v{KQ}"]
    for i in range(4):
        fill += cexp(WL + 2 * i, WL + 2 * i + 1, ER, TH, f"v{T2}", T0, T1)
        if i < 3: fill += [f"v_add_f32 v{T2}, {f32hex(128.0)}, v{T2}"]
    fill += [f"v_mul_f32 v{T0}, v{vLre}, v{vLre}", f"v_fma_f32 v{T0}, v{vLim}, v{vLim}, v{T0}", f"v_rcp_f32 v{T0}, v{T0}",
             f"v_add_f32 v{T1}, -1.0, v{L1}", f"v_add_f32 v{T0}, v{T0}, v{T0}",
             f"v_mul_f32 v{T2}, v{T1}, v{vLre}", f"v_mul_f32 v{T3}, v{L1+1}, v{vLre}",
             f"v_fma_f32 v{T2}, v{L1+1}, v{vLim}, v{T2}", f"v_fma_f32 v{T3}, -v{T1}, v{vLim}, v{T3}",
             f"v_mul_f32 v{CF}, v{T2}, v{T0}", f"v_mul_f32 v{CF+1}, v{T3}, v{T0}"]
    fill += cmul_pk(WT, CF, L1)
    for i in range(1, 16): fill += cmul_pk(WT + 2 * i, WT + 2 * i - 2, L1)
    RA, IA, F0, F1 = 64, 96, 128, 160
    def read_frags(step, ks, F):
        base = vA1 if ks else vA0
        for m in range(8):
            a(f"ds_read_b128 {vr(F+4*m,4)}, v{base} offset:{(step % 4)*16384 + m*2048}"); lg.issue(f"f{step}_{ks}")
    def mfmas(step, ks, F, nfill):
        for m in range(8):
            for ar_i in range(2):
                D = (IA if ar_i else RA) + 4 * m
                Cs = "0" if (step == 0 and ks == 0) else vr(D, 4)
                a(f"v_mfma_f32_16x16x32_bf16 {vr(D,4)}, {vr(F+4*m,4)}, {ar(16*step+8*ks+4*ar_i,4)}, {Cs}")
                for _ in range(nfill):
                    if fill: a(fill.pop(0))
    vm.wait("st0")
    a("s_barrier")
    st()
    a(f"s_lshl_b32 s{sT0}, s{sS}, 4")
    a(f"s_add_u32 s{sT1}, s{sT0}, s{sC}")
    a(f"v_mov_b32 v{vT}, s{sT1}")
    a(f"v_mov_b32 v{vT2}, 0x7fffffff")
    a(f"v_cmp_eq_u32 vcc, 0, v0")
    a(f"v_cndmask_b32 v{vT}, v{vT2}, v{vT}, vcc")
    a(f"v_mov_b32 v{vT2}, 1")
    a(f"buffer_store_byte v{vT2}, v{vT}, s[44:47], 0 offen sc1"); vm.issue("flag")
    a(f"v_add_u32 v{vFL}, s{sT0}, v{vPC}")
    read_frags(0, 0, F0)
    for step in range(9):
        read_frags(step, 1, F1) if False else None
        lgq = len(lg.q)
        lg.wait(f"f{step}_0")
        read_frags(step, 1, F1)
        if step + 7 < 9: issue_step(step + 7)
        mfmas(step, 0, F0, 1 if step >= 1 else 0)
        lg.wait(f"f{step}_1")
        if step < 8:
            vm.wait(f"st{step+1}")
            a("s_barrier")
            if (step + 1) % 4 == 0:
                a(f"v_add_u32 v{vA0}, 0x10000, v{vA0}")
                a(f"v_add_u32 v{vA1}, 0x10000, v{vA1}")
            read_frags(step + 1, 0, F0)
        if step == 7:
            a(f"buffer_load_ubyte v{vT}, v{vFL}, s[44:47], 0 offen sc1"); vm.issue("flg")
        mfmas(step, 1, F1, 1 if step >= 1 else 0)
    while fill: a(fill.pop(0))
    st()
    def pr(i): return RA + 4 * (i // 2) + 2 * (i % 2)
    def pi(i): return IA + 4 * (i // 2) + 2 * (i % 2)
    for i in range(1, 16):
        a(pk_fma_b(pr(i), pr(i - 1), L1, False, pr(i)))
        a(pk_fma_b(pi(i), pi(i - 1), L1, False, pi(i)))
        a(pk_fma_b(pr(i), pi(i - 1), L1, True, pr(i), neg=True))
        a(pk_fma_b(pi(i), pr(i - 1), L1, True, pi(i)))
    a0r, a0i, a1r, a1i = pr(15), pi(15), pr(15) + 1, pi(15) + 1
    AR, AI, ZR, ZI, TR, TI, YR, YI, Z2R, Z2I, SR, SI = 40, 41, 42, 43, 44, 45, 46, 47, 48, 49, 50, 51
    EPR, EPI = 52, 54
    for s in cfma(AR, AI, L16, L16 + 1, a0r, a0i, a1r, a1i): a(s)
    a(f"v_mov_b32 v{ZR}, 0"); a(f"v_mov_b32 v{ZI}, 0")
    a(f"v_mov_b32 v{Z2R}, 0"); a(f"v_mov_b32 v{Z2I}, 0")
    a(f"v_mov_b32 v{TR}, v{AR}"); a(f"v_mov_b32 v{TI}, v{AI}")
    a(f"v_permlane16_swap_b32 v{ZR}, v{TR}"); a(f"v_permlane16_swap_b32 v{ZI}, v{TI}")
    for s in cfma(YR, YI, L32, L32 + 1, ZR, ZI, AR, AI): a(s)
    a(f"v_mov_b32 v{TR}, v{YR}"); a(f"v_mov_b32 v{TI}, v{YI}")
    a(f"v_permlane16_swap_b32 v{TR}, v{YR}"); a(f"v_permlane16_swap_b32 v{TI}, v{YI}")
    a(f"v_permlane32_swap_b32 v{Z2R}, v{YR}"); a(f"v_permlane32_swap_b32 v{Z2I}, v{YI}")
    for s in cfma(SR, SI, L64, L64 + 1, Z2R, Z2I, YR, YI): a(s)
    a(f"v_and_b32 v{SR}, -2, v{SR}"); a(f"v_and_b32 v{SI}, -2, v{SI}")
    a(f"buffer_store_dwordx2 v[{SR}:{SI}], v{vSO}, s[40:43], 0 offen sc1"); vm.issue("pub")
    st()
    for s in cfma(EPR, EPI, M3, M3 + 1, Z2R, Z2I, ZR, ZI): a(s)
    for s in cfma(EPR + 1, EPI + 1, L16, L16 + 1, EPR, EPI, a0r, a0i): a(s)
    RN = F0
    def pn(i): return RN + 4 * (i // 2) + 2 * (i % 2)
    for i in range(16):
        a(pk_mul_b(pn(i), pr(i), CF, False))
        a(pk_fma_b(pn(i), pi(i), CF, True, pn(i), neg=True))
        a(pk_mul_b(pi(i), pi(i), CF, False, neg=True))
        a(pk_fma_b(pi(i), pr(i), CF, True, pi(i), neg=True))
    vm.wait("flg")
    a.label(f"{name}_fl")
    a(f"v_cmp_ne_u32 vcc, 0, v{vT}")
    a(f"v_cmp_le_u32 s[60:61], s{sC}, v{vPC}")
    a(f"s_or_b64 vcc, vcc, s[60:61]")
    a(f"s_cmp_eq_u64 vcc, exec")
    a(f"s_cbranch_scc1 {name}_fl_ok")
    a(f"s_sleep 2")
    a(f"buffer_load_ubyte v{vT}, v{vFL}, s[44:47], 0 offen sc1")
    a("s_waitcnt vmcnt(0)")
    a(f"s_branch {name}_fl")
    a.label(f"{name}_fl_ok")
    st()
    SL = F1
    LOi = F1 + 8
    for i in range(4):
        a(f"v_subrev_u32 v{LOi+i}, {(i+1)*4608}, v{vLO}")
    a.label(f"{name}_poll")
    for i in range(4):
        a(f"buffer_load_dwordx2 {vr(SL+2*i,2)}, v{LOi+i}, s[40:43], 0 offen sc1")
    a("s_waitcnt vmcnt(0)"); vm.q = []
    a(f"v_max_u32 v{TR}, v{SL}, v{SL+1}")
    a(f"v_max3_u32 v{TR}, v{SL+2}, v{SL+3}, v{TR}")
    a(f"v_max3_u32 v{TI}, v{SL+4}, v{SL+5}, v{SL+6}")
    a(f"v_max3_u32 v{TR}, v{SL+7}, v{TI}, v{TR}")
    a(f"v_cmp_eq_u32 vcc, -1, v{TR}")
    a(f"s_cmp_lg_u64 vcc, 0")
    a(f"s_cbranch_scc1 {name}_poll")
    st()
    HR, HI = 56, 57
    a(f"v_mul_f32 v{HR}, v{WL}, v{SL}")
    a(f"v_mul_f32 v{HI}, v{WL}, v{SL+1}")
    a(f"v_fma_f32 v{HR}, -v{WL+1}, v{SL+1}, v{HR}")
    a(f"v_fma_f32 v{HI}, v{WL+1}, v{SL}, v{HI}")
    for i in range(1, 4):
        for s in cfma(HR, HI, WL + 2 * i, WL + 2 * i + 1, SL + 2 * i, SL + 2 * i + 1, HR, HI): a(s)
    for sw in ("16", "32"):
        a(f"v_mov_b32 v{TR}, v{HR}"); a(f"v_mov_b32 v{TI}, v{HI}")
        a(f"v_permlane{sw}_swap_b32 v{TR}, v{HR}"); a(f"v_permlane{sw}_swap_b32 v{TI}, v{HI}")
        a(f"v_add_f32 v{HR}, v{HR}, v{TR}"); a(f"v_add_f32 v{HI}, v{HI}, v{TI}")
    a(pk_fma_b(EPR, MR, HR, False, EPR))
    a(pk_fma_b(EPI, MR, HR, True, EPI))
    a(pk_fma_b(EPR, MI, HR, True, EPR, neg=True))
    a(pk_fma_b(EPI, MI, HR, False, EPI))
    a(f"s_mul_i32 s{sT0}, s{sC}, {2*36*4096}")
    a(f"s_lshl_b32 s{sT1}, s{sPG}, 12")
    a(f"s_add_u32 s{sT0}, s{sT0}, s{sT1}")
    a(f"s_add_u32 s{sT1}, s{sT0}, {36*4096}")
    PK = RA
    for half in range(2):
        for i in range(8 * half, 8 * half + 8):
            w = WT + 2 * i
            a(pk_fma_b(pn(i), EPR, w, False, pn(i)))
            a(pk_fma_b(pi(i), EPI, w, False, pi(i), neg=True))
            a(pk_fma_b(pn(i), EPI, w, True, pn(i), neg=True))
            a(pk_fma_b(pi(i), EPR, w, True, pi(i), neg=True))
        for arr, base in ((0, RN), (1, IA)):
            for sub in range(2):
                ist = 2 * sub + half
                d = PK + 16 * arr + 4 * ist
                for mm in range(4):
                    m = 4 * half + mm
                    a(f"v_cvt_pk_bf16_f32 v{d+mm}, v{base+4*m+sub}, v{base+4*m+2+sub}")
                a(f"buffer_store_dwordx4 {vr(d,4)}, v{vHO}, s[36:39], s{sT1 if arr else sT0} offen offset:{ist*1024}")
    st()
    st.dump()
    a.label(f"{name}_end")
    a("s_endpgm")
    return dict(vgpr=400, accum=256, sgpr=100)

def gen_a2(a, name):
    vm = Ctr(a, "vmcnt", 63); lg = Ctr(a, "lgkmcnt", 15)
    a(f"s_cmp_ge_u32 s2, 144")
    a(f"s_cbranch_scc1 {name}_end")
    st = Stamp(a, 2); st()
    a("s_load_dwordx2 s[4:5], s[0:1], 0")
    a("s_load_dwordx4 s[8:11], s[0:1], 40")
    a("s_load_dwordx2 s[6:7], s[0:1], 64")
    a("s_load_dwordx2 s[12:13], s[0:1], 128")
    a("s_load_dwordx2 s[14:15], s[0:1], 144")
    sC, sS, sW, sPP, sHB, sCB, sT0, sT1, sLB, sKH, sDH, sD0 = range(48, 60)
    a(f"s_and_b32 s{sC}, s2, 7")
    a(f"s_lshl_b32 s{sC}, s{sC}, 1")
    a(f"s_lshr_b32 s{sS}, s2, 3")
    a(f"s_cmp_ge_u32 s{sS}, 9")
    a(f"s_cselect_b32 s{sT0}, 1, 0")
    a(f"s_add_u32 s{sC}, s{sC}, s{sT0}")
    a(f"s_mul_i32 s{sT1}, s{sT0}, 9")
    a(f"s_sub_u32 s{sS}, s{sS}, s{sT1}")
    a(f"s_lshl_b32 s{sPP}, s{sS}, 1")
    a(f"s_add_u32 s{sPP}, s{sPP}, s{sT1}")
    a(f"s_cmp_ge_u32 s{sPP}, 18")
    a(f"s_cselect_b32 s{sT0}, 18, 0")
    a(f"s_sub_u32 s{sPP}, s{sPP}, s{sT0}")
    vL, vN, vQ, vDM, vCO, vR0, vR1, vT, vT2, vXO, vOO, vRW, vRR = range(1, 14)
    a(f"v_lshrrev_b32 v{vT}, 6, v0")
    a(f"v_and_b32 v{vL}, 63, v0")
    a(f"v_readfirstlane_b32 s{sW}, v{vT}")
    a(f"v_and_b32 v{vN}, 15, v0")
    a(f"v_lshrrev_b32 v{vQ}, 4, v{vL}")
    a(f"v_lshlrev_b32 v{vDM}, 4, v{vL}")
    a(f"s_lshr_b32 s{sKH}, s{sW}, 1")
    a(f"s_and_b32 s{sDH}, s{sW}, 1")
    a(f"v_mul_u32_u24 v{vCO}, 1152, v{vN}")
    a(f"v_lshl_add_u32 v{vCO}, v{vQ}, 4, v{vCO}")
    a(f"v_and_b32 v{vT}, 1, v{vQ}")
    a(f"v_mul_u32_u24 v{vT}, 12, v{vT}")
    a(f"v_lshrrev_b32 v{vT2}, 2, v{vN}")
    a(f"v_add_u32 v{vT}, v{vT}, v{vT2}")
    a(f"v_lshlrev_b32 v{vR0}, 5, v{vT}")
    a(f"v_and_b32 v{vT}, 3, v{vN}")
    a(f"v_lshl_add_u32 v{vR0}, v{vT}, 3, v{vR0}")
    a(f"v_lshrrev_b32 v{vT}, 1, v{vQ}")
    a(f"v_lshl_add_u32 v{vR0}, v{vT}, 12, v{vR0}")
    a(f"s_lshl_b32 s{sT0}, s{sKH}, 13")
    a(f"v_add_u32 v{vR0}, s{sT0}, v{vR0}")
    a(f"v_xor_b32 v{vR1}, 128, v{vR0}")
    a(f"v_lshrrev_b32 v{vT}, 3, v{vN}")
    a(f"v_lshlrev_b32 v{vT}, 5, v{vT}")
    a(f"v_and_b32 v{vT2}, 7, v{vN}")
    a(f"v_add_u32 v{vT}, v{vT}, v{vT2}")
    a(f"s_lshl_b32 s{sT0}, s{sC}, 7")
    a(f"s_lshl_b32 s{sT1}, s{sKH}, 6")
    a(f"s_add_u32 s{sT0}, s{sT0}, s{sT1}")
    a(f"v_add_u32 v{vT}, s{sT0}, v{vT}")
    a(f"s_lshl_b32 s{sD0}, s{sS}, 6")
    a(f"s_lshl_b32 s{sT1}, s{sDH}, 5")
    a(f"s_add_u32 s{sD0}, s{sD0}, s{sT1}")
    a(f"v_lshl_add_u32 v{vT2}, v{vQ}, 2, s{sD0}")
    a(f"v_mul_u32_u24 v{vXO}, 1152, v{vT}")
    a(f"v_lshl_add_u32 v{vXO}, v{vT2}, 1, v{vXO}")
    a(f"v_mul_u32_u24 v{vOO}, 4608, v{vT}")
    a(f"v_lshl_add_u32 v{vOO}, v{vT2}, 2, v{vOO}")
    a(f"v_lshlrev_b32 v{vT2}, 1, v{vT2}")
    a(f"s_lshl_b32 s{sT0}, s{sW}, 13")
    a(f"v_add_u32 v{vRR}, s{sT0}, v{vDM}")
    a(f"v_xor_b32 v{vRW}, 0x4000, v{vRR}")
    a(f"s_mul_i32 s{sHB}, s{sC}, {2*36*4096}")
    a(f"s_mul_i32 s{sT0}, s{sKH}, {36*4096}")
    a(f"s_add_u32 s{sHB}, s{sHB}, s{sT0}")
    a(f"s_lshl_b32 s{sT0}, s{sDH}, 12")
    a(f"s_add_u32 s{sHB}, s{sHB}, s{sT0}")
    a(f"s_mul_i32 s{sCB}, s{sD0}, 1152")
    a(f"s_lshl_b32 s{sLB}, s{sW}, 12")
    a("s_waitcnt lgkmcnt(0)")
    srd(a, 24, 4, 2048 * 1152)
    a(f"s_cmp_eq_u32 s{sKH}, 0")
    a(f"s_cselect_b32 s28, s8, s10")
    a(f"s_cselect_b32 s29, s9, s11")
    a(f"s_mov_b32 s30, {576*1152}")
    a(f"s_mov_b32 s31, 0x00020000")
    srd(a, 32, 12, 2048 * 4608)
    srd(a, 36, 14, H_BYTES, WS_H)
    XS, DS = 16, 32
    for mt in range(2):
        a(f"global_load_dwordx2 {vr(DS+2*mt,2)}, v{vT2}, s[6:7] offset:{32*mt}"); vm.issue("sk")
    for ist in range(4):
        a(f"s_mov_b32 s{sT0}, {ist*8*1152}")
        for mt in range(2):
            a(f"buffer_load_dwordx2 {vr(XS+2*(4*mt+ist),2)}, v{vXO}, s[24:27], s{sT0} offen offset:{32*mt}"); vm.issue("sk")
    NS = 8
    def issue_stage(st):
        a(f"s_lshl_b32 s{sT0}, s{sPP}, 13")
        a(f"s_add_u32 s{sT0}, s{sT0}, s{sHB}")
        a(f"s_add_u32 m0, s{sLB}, {(st % NS)*16384}")
        for e in range(4):
            a(f"buffer_load_dwordx4 v{vDM}, s[36:39], s{sT0} offen offset:{e*1024} lds"); vm.issue(f"st{st}")
        a(f"s_lshl_b32 s{sT0}, s{sPP}, 6")
        a(f"s_add_u32 s{sT0}, s{sT0}, s{sCB}")
        a(f"s_add_u32 s{sT1}, s{sT0}, {16*1152}")
        for mt in range(2):
            a(f"buffer_load_dwordx4 {ar(8*st+4*mt,4)}, v{vCO}, s[28:31], s{sT1 if mt else sT0} offen"); vm.issue(f"st{st}")
        a(f"s_add_u32 s{sPP}, s{sPP}, 1")
        a(f"s_cmp_ge_u32 s{sPP}, 18")
        a(f"s_cselect_b32 s{sPP}, 0, s{sPP}")
    stp = st; stp()
    for st in range(NS): issue_stage(st)
    stp()
    ACC = 64
    def acc(nt, mt): return ACC + 8 * nt + 4 * mt
    SK = 128
    vm.wait("sk")
    for mt in range(2):
        a(f"v_lshlrev_b32 v{36+4*mt}, 16, v{DS+2*mt}")
        a(f"v_and_b32 v{37+4*mt}, 0xffff0000, v{DS+2*mt}")
        a(f"v_lshlrev_b32 v{38+4*mt}, 16, v{DS+2*mt+1}")
        a(f"v_and_b32 v{39+4*mt}, 0xffff0000, v{DS+2*mt+1}")
    for ist in range(4):
        for mt in range(2):
            x = XS + 2 * (4 * mt + ist); d = SK + 8 * ist + 4 * mt
            a(f"v_lshlrev_b32 v{d}, 16, v{x}")
            a(f"v_and_b32 v{d+1}, 0xffff0000, v{x}")
            a(f"v_lshlrev_b32 v{d+2}, 16, v{x+1}")
            a(f"v_and_b32 v{d+3}, 0xffff0000, v{x+1}")
            a(f"v_pk_mul_f32 {vr(d,2)}, {vr(d,2)}, {vr(36+4*mt,2)}")
            a(f"v_pk_mul_f32 {vr(d+2,2)}, {vr(d+2,2)}, {vr(38+4*mt,2)}")
            for r in range(4):
                a(f"v_cvt_pk_bf16_f32 v{d+r}, 0, v{d+r}")
    F = [160, 192]
    def read_frags(st, qh, Fb):
        slot = st % NS
        for ist in range(4):
            off = (slot % 4) * 16384 + ist * 1024 + qh * 512
            a(f"ds_read_b64_tr_b16 {vr(Fb+4*ist,2)}, v{vR0} offset:{off}"); lg.issue(f"f{st}_{qh}")
            a(f"ds_read_b64_tr_b16 {vr(Fb+4*ist+2,2)}, v{vR1} offset:{off}"); lg.issue(f"f{st}_{qh}")
    def mfmas(st, qh, Fb):
        for ist in range(4):
            for mt in range(2):
                D = acc(4 * qh + ist, mt)
                Cs = "0" if st == 0 else vr(D, 4)
                a(f"v_mfma_f32_16x16x32_bf16 {vr(D,4)}, {ar(8*st+4*mt,4)}, {vr(Fb+4*ist,4)}, {Cs}")
    vm.wait("st0")
    a("s_barrier")
    stp()
    read_frags(0, 0, F[0])
    for st in range(18):
        lg.wait(f"f{st}_0")
        read_frags(st, 1, F[1])
        mfmas(st, 0, F[0])
        lg.wait(f"f{st}_1")
        if st < 17:
            vm.wait(f"st{st+1}")
            a("s_barrier")
            if (st + 1) % 4 == 0:
                a(f"v_xor_b32 v{vR0}, 0x10000, v{vR0}")
                a(f"v_xor_b32 v{vR1}, 0x10000, v{vR1}")
            read_frags(st + 1, 0, F[0])
            if st + NS < 18: issue_stage(st + NS)
        mfmas(st, 1, F[1])
    a("s_barrier")
    stp()
    a(f"s_cmp_eq_u32 s{sKH}, 0")
    a.fence()
    a(f"s_cbranch_scc1 {name}_k0")
    def red(keep):
        send = 1 - keep
        for j in range(8):
            a(f"ds_write_b128 v{vRW}, {vr(ACC+32*send+4*j,4)} offset:{j*1024}")
        for j in range(16):
            a(f"v_pk_add_f32 {vr(SK+2*j,2)}, {vr(SK+2*j,2)}, {vr(ACC+32*keep+2*j,2)}")
    red(1)
    a(f"s_branch {name}_k1")
    a.label(f"{name}_k0")
    red(0)
    a.label(f"{name}_k1")
    a("s_waitcnt lgkmcnt(0)")
    a("s_barrier")
    RB = 160
    for j in range(8):
        a(f"ds_read_b128 {vr(RB+4*j,4)}, v{vRR} offset:{j*1024}")
    for j in range(8):
        ist, mt = j // 2, j % 2
        a(f"s_waitcnt lgkmcnt({7-j})")
        a(f"v_pk_add_f32 {vr(SK+4*j,2)}, {vr(SK+4*j,2)}, {vr(RB+4*j,2)}")
        a(f"v_pk_add_f32 {vr(SK+4*j+2,2)}, {vr(SK+4*j+2,2)}, {vr(RB+4*j+2,2)}")
        if mt == 0: a(f"s_mov_b32 s{sT0}, {ist*8*4608}")
        a(f"buffer_store_dwordx4 {vr(SK+4*j,4)}, v{vOO}, s[32:35], s{sT0} offen offset:{64*mt}")
    stp()
    stp.dump()
    a.label(f"{name}_end")
    a("s_endpgm")
    return dict(vgpr=400, accum=256, sgpr=100)

def kd(name, info):
    return f""".p2align 6
.amdhsa_kernel {name}
  .amdhsa_next_free_vgpr {info['vgpr']}
  .amdhsa_next_free_sgpr {info['sgpr']}
  .amdhsa_accum_offset {info['accum']}
  .amdhsa_group_segment_fixed_size 0
  .amdhsa_kernarg_size 152
  .amdhsa_user_sgpr_count 2
  .amdhsa_user_sgpr_kernarg_segment_ptr 1
  .amdhsa_system_sgpr_workgroup_id_x 1
  .amdhsa_float_denorm_mode_32 3
.end_amdhsa_kernel
"""

def build(kernels, path):
    hdr = ""
    body = '.amdgcn_target "amdgcn-amd-amdhsa--gfx950"\n.text\n'
    kds = '.section .rodata,"a"\n'
    seen = set()
    for name, fn, grid, block, lds in kernels:
        hdr += f"; @launch kernel={name} grid=({grid},1,1) block=({block},1,1) lds={lds}\n"
        if name in seen: continue
        seen.add(name)
        a = Asm()
        info = fn(a, name)
        body += f".globl {name}\n.p2align 8\n.type {name},@function\n{name}:\n" + a.text()
        kds += kd(name, info)
        print(name, "instrs", a.count, "nops", a.nops)
    open(path, "w").write(hdr + body + kds)

if __name__ == "__main__":
    build([("a1_kernel", gen_a1, 144, 256, 147456), ("a2_kernel", gen_a2, 144, 256, 131072)], "k.s")
```

```python
from gen import *

U_ST, U_CH = 4160, 16640
K_BASE, K_CH = 66560, 4608
T_BASE, T_CH, T_ROW = 84992, 18432, 288
B_LDS = T_BASE + 4 * T_CH
OUT_ST = 4096 + 32

def xrows():
    def rb(j):
        import numpy as np
        x = np.float32(j); u = x.view(np.uint32); r = np.uint32((u + 0x7FFF + ((u >> 16) & 1)) & 0xFFFF0000)
        return int(r.view(np.float32))
    tiles = []
    tiles.append([i for i in range(16)])
    tiles.append([rb(256 + i) for i in range(16)])
    t2 = []
    for q in range(4):
        n = 2 + q // 2; h = q % 2
        t2 += [256 * n + 8 * h + 0, 256 * n + 8 * h + 4, 256 * n + 8 * h + 8, 256 * n + 8 * h + 8]
    tiles.append(t2)
    t3 = []
    for q in range(4):
        n = 4 + q
        t3 += [256 * n, 256 * n + 8, 256 * n + 16, 256 * n + 16]
    tiles.append(t3)
    ex = sorted(set(sum(tiles, [])))
    return ex, tiles

def gen_b(a, name, nwg=72):
    vm = Ctr(a, "vmcnt", 63); lg = Ctr(a, "lgkmcnt", 15)
    ex, tiles = xrows()
    assert len(ex) == 47
    rowidx = {e: i for i, e in enumerate(ex)}
    a(f"s_cmp_ge_u32 s2, {nwg}")
    a(f"s_cbranch_scc1 {name}_end")
    st = Stamp(a, 0); st()
    a("s_load_dwordx16 s[4:19], s[0:1], 72")
    sG, sW, sT0, sT1, sCH = 48, 49, 50, 51, 52
    a(f"s_and_b32 s{sG}, s2, 7")
    a(f"s_mul_i32 s{sG}, s{sG}, 9")
    a(f"s_lshr_b32 s{sT0}, s2, 3")
    a(f"s_add_u32 s{sG}, s{sG}, s{sT0}")
    vL, vI, vQ, vT, vT2, vUO, vPO, vTW, vUW, vAR, vBR, vKW, vPR, vXA = range(1, 15)
    a(f"v_lshrrev_b32 v{vT}, 6, v0")
    a(f"v_and_b32 v{vL}, 63, v0")
    a(f"v_readfirstlane_b32 s{sW}, v{vT}")
    a(f"v_and_b32 v{vI}, 15, v0")
    a(f"v_lshrrev_b32 v{vQ}, 4, v{vL}")
    a(f"v_mul_u32_u24 v{vUO}, {8*1152}, v0")
    a(f"s_lshl_b32 s{sT0}, s{sG}, 4")
    a(f"v_add_u32 v{vUO}, s{sT0}, v{vUO}")
    a(f"v_subrev_u32 v{vT}, {3*1152}, v{vUO}")
    a(f"v_mov_b32 v{vT2}, 0x7fffffff")
    a(f"v_cmp_eq_u32 vcc, 0, v0")
    a(f"v_cndmask_b32 v{vT}, v{vT}, v{vT2}, vcc")
    a(f"s_lshl_b32 s{sCH}, s{sG}, 3")
    a(f"s_add_u32 s{sCH}, s{sCH}, s{sW}")
    a(f"s_lshl_b32 s{sT0}, s{sCH}, 8")
    a(f"v_lshl_add_u32 v{vPO}, v{vL}, 2, s{sT0}")
    a(f"s_lshl_b32 s{sT0}, s{sCH}, 1")
    a(f"v_mov_b32 v{vT2}, s{sT0}")
    a("s_waitcnt lgkmcnt(0)")
    srd(a, 24, 4, 2048 * 1152)
    srd(a, 28, 18, 2048 * 4608)
    PAR = 20
    for r in range(2):
        for k in range(4):
            a(f"global_load_dword v{PAR+4*r+k}, v{vPO}, s[{6+2*k}:{7+2*k}] offset:{1024*r}"); vm.issue(f"par{r}")
        a(f"global_load_ushort v{28+r}, v{vT2}, s[14:15] offset:{8*r}"); vm.issue(f"par{r}")
        a(f"global_load_ushort v{30+r}, v{vT2}, s[16:17] offset:{8*r}"); vm.issue(f"par{r}")
    UR = 32
    for i in range(3):
        a(f"buffer_load_dwordx4 {vr(UR+4*i,4)}, v{vT}, s[24:27], 0 offen offset:{i*1152}"); vm.issue("u")
    for i in range(8):
        if i % 4 == 0: a(f"s_mov_b32 s{sT0}, {i*1152}")
        a(f"buffer_load_dwordx4 {vr(UR+12+4*i,4)}, v{vUO}, s[24:27], s{sT0} offen offset:{(i%4)*1152}"); vm.issue("u")
    a(f"s_mul_i32 s{sT0}, s{sW}, {T_CH}")
    a(f"s_add_u32 s{sT0}, s{sT0}, {T_BASE}")
    a(f"v_lshl_add_u32 v{vTW}, v{vL}, 2, s{sT0}")
    a(f"v_lshl_add_u32 v{vT}, v{vQ}, 4, s{sT0}")
    a(f"v_mul_u32_u24 v{vT2}, {T_ROW}, v{vI}")
    a(f"v_add_u32 v{vXA}, v{vT}, v{vT2}")
    a(f"v_add_u32 v{vXA+4}, {47*T_ROW}, v{vXA}")
    for t in (1, 2, 3):
        rows = [rowidx[e] for e in tiles[t]]
        b = min(rows); nib = [r - b for r in rows]; assert max(nib) < 16
        lo = sum(nib[i] << (4 * i) for i in range(8)); hi = sum(nib[8 + i] << (4 * i) for i in range(8))
        a(f"v_mov_b32 v{vXA+t}, {lo:#x}")
        a(f"v_mov_b32 v{vT2}, {hi:#x}")
        a(f"v_cmp_gt_u32 vcc, 8, v{vI}")
        a(f"v_cndmask_b32 v{vXA+t}, v{vT2}, v{vXA+t}, vcc")
        a(f"v_lshlrev_b32 v{vT2}, 2, v{vI}")
        a(f"v_and_b32 v{vT2}, 31, v{vT2}")
        a(f"v_bfe_u32 v{vXA+t}, v{vXA+t}, v{vT2}, 4")
        a(f"v_add_u32 v{vXA+t}, {b}, v{vXA+t}")
        a(f"v_mul_u32_u24 v{vXA+t}, {T_ROW}, v{vXA+t}")
        a(f"v_add_u32 v{vXA+t}, v{vXA+t}, v{vT}")
    a(f"v_lshlrev_b32 v{vUW}, 4, v0")
    a(f"v_add_u32 v{vUW}, 32, v{vUW}")
    a(f"v_sub_u32 v{vT}, 3, v{vI}")
    a(f"v_and_b32 v{vT}, 3, v{vT}")
    a(f"v_add3_u32 v{vT2}, v{vI}, v{vT}, 1")
    a(f"v_lshl_add_u32 v{vT2}, v{vQ}, 3, v{vT2}")
    a(f"v_mul_u32_u24 v{vAR}, {U_ST}, v{vT}")
    a(f"v_lshl_add_u32 v{vAR}, v{vT2}, 1, v{vAR}")
    a(f"s_mul_i32 s{sT0}, s{sW}, {U_CH}")
    a(f"v_add_u32 v{vAR}, s{sT0}, v{vAR}")
    a(f"v_lshlrev_b32 v{vPR}, 5, v{vI}")
    a(f"v_lshl_add_u32 v{vPR}, v{vQ}, 3, v{vPR}")
    a(f"v_add_u32 v{vPR}, 32, v{vPR}")
    a(f"v_add_u32 v{vPR}, s{sT0}, v{vPR}")
    a(f"s_mul_i32 s{sT0}, s{sW}, {K_CH}")
    a(f"s_add_u32 s{sT0}, s{sT0}, {K_BASE}")
    a(f"v_lshlrev_b32 v{vT}, 5, v{vI}")
    a(f"v_sub_u32 v{vKW}, 480, v{vT}")
    a(f"v_add_u32 v{vKW}, s{sT0}, v{vKW}")
    a(f"v_lshl_add_u32 v{vBR}, v{vQ}, 4, v{vKW}")
    vK01, vK2, vK3 = 76, 77, 78
    a(f"v_lshlrev_b32 v{vT}, 3, v{vQ}")
    a(f"v_sub_u32 v{vK01}, v{vKW}, v{vT}")
    a(f"v_lshrrev_b32 v{vT}, 1, v{vQ}")
    a(f"v_lshlrev_b32 v{vT}, 9, v{vT}")
    a(f"v_and_b32 v{vT2}, 1, v{vQ}")
    a(f"v_lshl_add_u32 v{vT}, v{vT2}, 4, v{vT}")
    a(f"v_sub_u32 v{vK2}, v{vKW}, v{vT}")
    a(f"v_lshlrev_b32 v{vT}, 9, v{vQ}")
    a(f"v_sub_u32 v{vK3}, v{vKW}, v{vT}")
    Z = 80
    for i in range(4): a(f"v_mov_b32 v{Z+i}, 0")
    a(f"v_min_u32 v{vT}, 29, v{vL}")
    a(f"v_lshl_add_u32 v{vT}, v{vT}, 4, s{sT0}")
    a(f"ds_write_b128 v{vT}, {vr(Z,4)} offset:4096")
    a(f"v_and_b32 v{vT}, 1, v{vL}")
    a(f"v_lshlrev_b32 v{vT}, 4, v{vT}")
    a(f"v_bfe_u32 v{vT2}, v{vL}, 1, 2")
    a(f"v_mul_u32_u24 v{vT2}, {U_ST}, v{vT2}")
    a(f"s_mul_i32 s{sT1}, s{sW}, {U_CH}")
    a(f"v_add3_u32 v{vT}, v{vT}, v{vT2}, s{sT1}")
    a(f"ds_write_b128 v{vT}, {vr(Z,4)}")
    sSEL0, sSEL1 = 53, 54
    a(f"s_mov_b32 s{sSEL0}, 0x05040100")
    a(f"s_mov_b32 s{sSEL1}, 0x07060302")
    RES = 84

    def kgen(r):
        ER, TH, DT, T0, T1 = 116, 117, 118, 119, 120
        E1, E16, Q1, CC = 122, 124, 126, 128
        P = 130
        Q = 164
        TM = 180
        CV = 188
        KA = 196
        XF = 212
        vm.wait(f"par{r}")
        a(f"v_lshlrev_b32 v{DT}, 16, v{28+r}")
        a(f"v_mul_f32 v{DT}, {LOG2E}, v{DT}")
        a(f"v_exp_f32 v{DT}, v{DT}")
        a(f"v_cvt_pk_bf16_f32 v{DT}, 0, v{DT}")
        cvn = [0]
        for ps in range(2):
            def unp(d, s):
                if ps == 0: a(f"v_lshlrev_b32 v{d}, 16, v{s}")
                else: a(f"v_and_b32 v{d}, 0xffff0000, v{s}")
            def put(row, pair, neg=False):
                c = CV + cvn[0] % 8; cvn[0] += 1
                n = " neg_hi:[0,0]" if False else ""
                s1 = f"-v{pair+1}" if neg else f"v{pair+1}"
                a(f"v_cvt_pk_bf16_f32 v{c}, v{pair}, {s1}")
                a(f"ds_write_b32 v{vTW}, v{c} offset:{row*T_ROW}")
            unp(ER, PAR + 4 * r); unp(TH, PAR + 4 * r + 1); unp(CC, PAR + 4 * r + 2); unp(CC + 1, PAR + 4 * r + 3)
            a(f"v_mul_f32 v{ER}, {LOG2E}, v{ER}")
            a(f"v_exp_f32 v{ER}, v{ER}")
            a(f"v_mul_f32 v{TH}, v{TH}, v{DT}")
            a(f"v_cvt_pk_bf16_f32 v{ER}, 0, v{ER}")
            a(f"v_mul_f32 v{TH}, {INV2PI}, v{TH}")
            a(f"v_mul_f32 v{ER}, v{ER}, v{DT}")
            a(f"v_mul_f32 v{ER}, 0xbfb8aa3b, v{ER}")
            a(f"v_add_f32 v{T0}, v{DT}, v{DT}")
            a(f"v_mul_f32 v{CC}, v{CC}, v{T0}")
            a(f"v_mul_f32 v{CC+1}, v{CC+1}, v{T0}")
            for s in cexp(P + 2, P + 3, ER, TH, None, T0, T1): a(s)
            for s in cexp(P + 32, P + 33, ER, TH, f32hex(16.0), T0, T1): a(s)
            for s in cexp(Q + 2, Q + 3, ER, TH, f32hex(256.0), T0, T1): a(s)
            if ps == 1: lg.wait_all()
            a(f"v_mov_b32 v{T0}, 0x3f80")
            a(f"ds_write_b32 v{vTW}, v{T0} offset:{rowidx[0]*T_ROW}")
            put(rowidx[1], P + 2)
            for k in range(2, 16):
                for s in cmul_pk(P + 2 * k, P + 2 * k - 2, P + 2): a(s)
                put(rowidx[k], P + 2 * k)
            put(47, CC, neg=True)
            prev = CC
            for b in range(1, 16):
                d = TM + 2 * (b % 2)
                for s in cmul_pk(d, prev, P + 32): a(s)
                put(47 + b, d, neg=True); prev = d
            put(rowidx[256], Q + 2)
            for n in range(2, 8):
                for s in cmul_pk(Q + 2 * n, Q + 2 * n - 2, Q + 2): a(s)
                put(rowidx[256 * n], Q + 2 * n)
            cnt = 0
            for e in ex:
                if e > 256 and e % 256:
                    d = TM + 4 + 2 * (cnt % 2); cnt += 1
                    for s in cmul_pk(d, Q + 2 * (e // 256), P + 2 * (e % 256)): a(s)
                    put(rowidx[e], d)
            lg.wait_all()
            for ks in range(4):
                for t in range(5):
                    a(f"ds_read_b128 {vr(XF+4*t,4)}, v{vXA+t} offset:{ks*64}")
                lg.wait_all()
                for t in range(4):
                    Cs = "0" if (ps == 0 and ks == 0) else vr(KA + 4 * t, 4)
                    a(f"v_mfma_f32_16x16x32_bf16 {vr(KA+4*t,4)}, {vr(XF+4*t,4)}, {vr(XF+16,4)}, {Cs}")
        W = XF
        for t in range(2):
            k = KA + 4 * t
            a(f"v_cvt_pk_bf16_f32 v{W+2*t}, v{k+3}, v{k+2}")
            a(f"v_cvt_pk_bf16_f32 v{W+2*t+1}, v{k+1}, v{k}")
            a(f"ds_write_b64 v{vK01}, {vr(W+2*t,2)} offset:{2*(2044-240-256*t)}")
        k = KA + 8
        for j, (x, y) in enumerate(((2, 2), (1, 1), (1, 0), (0, 0))):
            a(f"v_cvt_pk_bf16_f32 v{W+4+j}, v{k+x}, v{k+y}")
        a(f"ds_write_b128 v{vK2}, {vr(W+4,4)} offset:{2*(2040-240-512)}")
        k = KA + 12
        for j, (x, y) in enumerate(((2, 2), (2, 2), (1, 1), (1, 1), (1, 1), (1, 0), (0, 0), (0, 0))):
            a(f"v_cvt_pk_bf16_f32 v{W+8+j}, v{k+x}, v{k+y}")
        a(f"ds_write_b128 v{vK3}, {vr(W+8,4)} offset:{2*(2032-240-1024)}")
        a(f"ds_write_b128 v{vK3}, {vr(W+12,4)} offset:{2*(2032-240-1024)+16}")

    def ucopies(r):
        TMP = 232
        vm.wait("u")
        for ch in range(4):
            dw = 2 * r + ch // 2; sel = sSEL1 if ch % 2 else sSEL0
            for s in range(4):
                d = TMP + 4 * s
                for j in range(4):
                    rho = -s + 2 * j
                    r0 = UR + 4 * (rho + 3) + dw; r1 = UR + 4 * (rho + 4) + dw
                    a(f"v_perm_b32 v{d+j}, v{r1}, v{r0}, s{sel}")
                a(f"ds_write_b128 v{vUW}, {vr(d,4)} offset:{ch*U_CH + s*U_ST}")

    def conv(r):
        ACC = 116
        AF = [148, 180]
        BF = 212
        for dp in range(8):
            A = AF[dp % 2]
            for m in range(8):
                off = 64 * (dp + 8 * m)
                a(f"ds_read_b128 {vr(BF+4*m,4)}, v{vBR} offset:{2*(1792-256*m)+64*dp}")
                if m == 6: a("s_waitcnt lgkmcnt(8)")
            for m in range(8):
                off = 64 * (dp + 8 * m)
                a(f"ds_read_b64 {vr(A+4*m,2)}, v{vAR} offset:{off}")
                a(f"ds_read_b64 {vr(A+4*m+2,2)}, v{vAR} offset:{off+8}")
                if m % 2 == 1: a("s_waitcnt lgkmcnt(8)")
            a("s_waitcnt lgkmcnt(0)")
            for m in range(8):
                for n1 in range(8 - m):
                    D = ACC + 4 * (n1 + m)
                    Cs = "0" if (dp == 0 and m == 0) else vr(D, 4)
                    a(f"v_mfma_f32_16x16x32_bf16 {vr(D,4)}, {vr(A+4*m,4)}, {vr(BF+4*n1,4)}, {Cs}")
        UU = 148; PP = 180; DD = 212
        for n in range(8):
            a(f"ds_read_b64 {vr(UU+2*n,2)}, v{vPR} offset:{512*n}")
        a(f"v_lshlrev_b32 v{DD}, 16, v{30+r}")
        a("s_waitcnt lgkmcnt(0)")
        for n in range(8):
            p = PP + 4 * n; u = UU + 2 * n; y = ACC + 4 * n
            a(f"v_lshlrev_b32 v{p}, 16, v{u}")
            a(f"v_and_b32 v{p+1}, 0xffff0000, v{u}")
            a(f"v_lshlrev_b32 v{p+2}, 16, v{u+1}")
            a(f"v_and_b32 v{p+3}, 0xffff0000, v{u+1}")
            a(pk_mul_b(p, p, DD, False)); a(pk_mul_b(p + 2, p + 2, DD, False))
            for k in range(4):
                a(f"v_cvt_pk_bf16_f32 v{p+k}, 0, v{p+k}")
                a(f"v_cvt_pk_bf16_f32 v{y+k}, 0, v{y+k}")
            a(f"v_pk_add_f32 {vr(p,2)}, {vr(p,2)}, {vr(y,2)}")
            a(f"v_pk_add_f32 {vr(p+2,2)}, {vr(p+2,2)}, {vr(y+2,2)}")
            a(f"v_cvt_pk_bf16_f32 v{RES+16*r+2*n}, v{p}, v{p+1}")
            a(f"v_cvt_pk_bf16_f32 v{RES+16*r+2*n+1}, v{p+2}, v{p+3}")

    st()
    vm.wait("par0")
    st()
    for r in range(2):
        kgen(r)
        st()
        if r == 1: a("s_barrier")
        ucopies(r)
        a("s_waitcnt lgkmcnt(0)")
        a("s_barrier")
        st()
        conv(r)
        st()
    a("s_barrier")
    a(f"v_lshlrev_b32 v{vT}, 5, v{vI}")
    a(f"v_lshl_add_u32 v{vT}, v{vQ}, 3, v{vT}")
    a(f"s_mul_i32 s{sT0}, s{sW}, {OUT_ST}")
    a(f"v_add_u32 v{vT}, s{sT0}, v{vT}")
    for r in range(2):
        for n in range(8):
            a(f"ds_write_b64 v{vT}, {vr(RES+16*r+2*n,2)} offset:{4*r*OUT_ST + 512*n}")
        a("s_waitcnt lgkmcnt(0)")
    a("s_barrier")
    a(f"v_lshrrev_b32 v{vT}, 1, v0")
    a(f"v_and_b32 v{vT2}, 1, v0")
    a(f"v_mul_u32_u24 v{vAR}, {4*OUT_ST}, v{vT2}")
    a(f"v_lshl_add_u32 v{vAR}, v{vT}, 5, v{vAR}")
    a(f"v_mul_u32_u24 v{vUO}, {16*4608}, v{vT}")
    a(f"v_lshl_add_u32 v{vUO}, v{vT2}, 4, v{vUO}")
    a(f"s_lshl_b32 s{sT0}, s{sG}, 5")
    a(f"s_add_u32 s{sT0}, s{sT0}, 2304")
    RD = 116
    for ch in range(4):
        for h in range(2):
            a(f"ds_read_b128 {vr(RD+8*ch+4*h,4)}, v{vAR} offset:{ch*OUT_ST+16*h}")
    a("s_waitcnt lgkmcnt(0)")
    OD = 148
    for row in range(16):
        d = OD + 4 * row
        for ch in range(4):
            s = RD + 8 * ch + row // 2
            if row % 2 == 0: a(f"v_lshlrev_b32 v{d+ch}, 16, v{s}")
            else: a(f"v_and_b32 v{d+ch}, 0xffff0000, v{s}")
        a(f"buffer_store_dwordx4 {vr(d,4)}, v{vUO}, s[28:31], s{sT0} offen")
        if row < 15: a(f"s_add_u32 s{sT0}, s{sT0}, 4608")
    st()
    st.dump()
    a.label(f"{name}_end")
    a("s_endpgm")
    return dict(vgpr=256, accum=256, sgpr=100)

if __name__ == "__main__":
    import gen
    if len(sys.argv) > 1 and sys.argv[1] == "st": gen.STAMPS = True
    build([("b_kernel", gen_b, 72, 256, B_LDS), ("a1_kernel", gen_a1, 144, 256, 147456), ("a2_kernel", gen_a2, 144, 256, 131072)], "k.s")
```

```python
import sys
sys.path.insert(0, "work")
import gen
from gen import *
from genb import xrows

NA, NB = 144, 72
LDS = 163840
KN = "concat_heads__ssm_conv_s5__ssm_conv_s4d__prompt_kernel"
OOB = "0x7fffffff"

sWG, sW = 2, 3

class St(Stamp):
    def __call__(self):
        if not gen.STAMPS: return
        a = self.a
        a(f"s_memtime s[96:97]")
        a(f"s_memrealtime s[{64+2*self.n}:{65+2*self.n}]")
        a("s_waitcnt lgkmcnt(0)")
        a(f"s_mov_b32 s{65+2*self.n}, s96")
        self.n += 1
        assert self.n <= 16
    def dump(self):
        if not gen.STAMPS: return
        a = self.a
        a("s_waitcnt vmcnt(0)")
        self()
        a("s_load_dwordx2 s[96:97], s[0:1], 144")
        a(f"s_lshl_b32 s98, s2, 2")
        a(f"s_and_b32 s99, s{sW}, 3")
        a(f"s_add_u32 s98, s98, s99")
        a(f"s_lshl_b32 s98, s98, 7")
        a(f"s_add_u32 s98, s98, {WS_STAMP + self.kid*1024*128}")
        a("v_mov_b32 v1, s98")
        a("s_waitcnt lgkmcnt(0)")
        for i in range(self.n):
            a(f"v_mov_b32 v2, s{64+2*i}")
            a(f"v_mov_b32 v3, s{65+2*i}")
            a(f"global_store_dwordx2 v1, v[2:3], s[96:97] offset:{8*i}")

def decode_cs(a, sC, sS, sT0, sT1):
    a(f"s_and_b32 s{sC}, s2, 7")
    a(f"s_lshl_b32 s{sC}, s{sC}, 1")
    a(f"s_lshr_b32 s{sS}, s2, 3")
    a(f"s_cmp_ge_u32 s{sS}, 9")
    a(f"s_cselect_b32 s{sT0}, 1, 0")
    a(f"s_add_u32 s{sC}, s{sC}, s{sT0}")
    a(f"s_mul_i32 s{sT1}, s{sT0}, 9")
    a(f"s_sub_u32 s{sS}, s{sS}, s{sT1}")

E_ROW = 256 + 0
E_HALF = 128 * E_ROW
PRE_FILL = 40
POLL_SLEEP = 2
XA = 2
WS_F = WS_S + S_BYTES

def gen_ac(a):
    vm = Ctr(a, "vmcnt", 63); lg = Ctr(a, "lgkmcnt", 15)
    st = St(a, 0); st()
    a("s_load_dwordx4 s[4:7], s[0:1], 8")
    a("s_load_dwordx2 s[8:9], s[0:1], 56")
    a("s_load_dwordx4 s[20:23], s[0:1], 136")
    sC, sS, sT0, sT1, sPG, sKH, sDH = 48, 49, 50, 51, 52, 53, 54
    decode_cs(a, sC, sS, sT0, sT1)
    vL, vPC, vQ, vA0, vA1, vB0, vB1, vT, vT2, vSO, vP2, vHO, vFL, vLO, vAb = range(1, 16)
    a(f"v_and_b32 v{vL}, 63, v0")
    a(f"v_and_b32 v{vPC}, 15, v0")
    a(f"v_lshrrev_b32 v{vQ}, 4, v{vL}")
    a(f"s_lshl_b32 s{sPG}, s{sS}, 2")
    a(f"s_add_u32 s{sPG}, s{sPG}, s{sW}")
    a(f"s_lshl_b32 s{sT1}, s{sPG}, 4")
    a(f"v_add_u32 v{vT}, s{sT1}, v{vPC}")
    a(f"v_lshlrev_b32 v{vP2}, 1, v{vT}")
    a(f"s_mul_i32 s{sT1}, s{sC}, 576")
    a(f"v_add_u32 v{vT}, s{sT1}, v{vT}")
    a(f"v_lshlrev_b32 v{vSO}, 3, v{vT}")
    a(f"v_mul_u32_u24 v{vT}, {4*4608}, v{vQ}")
    a(f"v_sub_u32 v{vLO}, v{vSO}, v{vT}")
    a(f"v_cmp_eq_u32 vcc, 3, v{vQ}")
    a(f"v_mov_b32 v{vT}, {OOB}")
    a(f"v_cndmask_b32 v{vSO}, v{vT}, v{vSO}, vcc")
    a("v_mov_b32 v44, -1")
    a("v_mov_b32 v45, -1")
    a("s_waitcnt lgkmcnt(0)")
    vLre, vLim, vLdt = 40, 41, 42
    a(f"global_load_ushort v{vLre}, v{vP2}, s[4:5]"); vm.issue("par")
    a(f"global_load_ushort v{vLim}, v{vP2}, s[6:7]"); vm.issue("par")
    a(f"global_load_ushort v{vLdt}, v{vP2}, s[8:9]"); vm.issue("par")
    srd(a, 40, 22, S_BYTES, WS_S)
    a(f"buffer_store_dwordx2 v[44:45], v{vSO}, s[40:43], 0 offen sc1"); vm.issue("clr")
    srd(a, 36, 22, H_BYTES, WS_H)
    srd(a, 44, 20, 256)
    a(f"v_lshrrev_b32 v{vT}, 1, v{vPC}")
    a(f"v_xor_b32 v{vT}, v{vT}, v{vQ}")
    a(f"v_lshlrev_b32 v{vT}, 4, v{vT}")
    a(f"v_lshl_add_u32 v{vAb}, v{vPC}, 7, v{vT}")
    a(f"v_lshrrev_b32 v{vT}, 1, v{vPC}")
    a(f"v_and_b32 v{vT}, 4, v{vT}")
    a(f"v_xor_b32 v{vT}, v{vT}, v{vPC}")
    a(f"v_lshlrev_b32 v{vHO}, 5, v{vT}")
    a(f"v_lshrrev_b32 v{vT}, 1, v{vQ}")
    a(f"v_lshl_add_u32 v{vHO}, v{vT}, 9, v{vHO}")
    a(f"v_and_b32 v{vT}, 1, v{vQ}")
    a(f"v_lshl_add_u32 v{vHO}, v{vT}, 4, v{vHO}")
    a(f"s_lshl_b32 s{sT0}, s{sS}, 4")
    a(f"v_add_u32 v{vFL}, s{sT0}, v{vPC}")
    sWB = 55
    a(f"s_lshl_b32 s{sWB}, s{sW}, 12")
    L1, L16, L32, L64, MR, MI, M3, WL, CF = 16, 18, 20, 22, 24, 26, 28, 30, 38
    ER, TH, T0, T1, T2, T3, KQ = 46, 47, 48, 49, 50, 51, 52
    WT = 192
    fill = []
    fill += [f"v_lshlrev_b32 v{vLre}, 16, v{vLre}", f"v_lshlrev_b32 v{vLim}, 16, v{vLim}", f"v_lshlrev_b32 v{vLdt}, 16, v{vLdt}",
             f"v_mul_f32 v{vLdt}, {LOG2E}, v{vLdt}", f"v_exp_f32 v{vLdt}, v{vLdt}", f"v_cvt_pk_bf16_f32 v{vLdt}, 0, v{vLdt}",
             f"v_mul_f32 v{ER}, v{vLdt}, v{vLre}", f"v_mul_f32 v{TH}, v{vLdt}, v{vLim}",
             f"v_mul_f32 v{ER}, {LOG2E}, v{ER}", f"v_mul_f32 v{TH}, {INV2PI}, v{TH}"]
    fill += cexp(L1, L1 + 1, ER, TH, None, T0, T1)
    fill += cexp(L16, L16 + 1, ER, TH, f32hex(16.0), T0, T1)
    fill += cexp(L32, L32 + 1, ER, TH, f32hex(32.0), T0, T1)
    fill += cexp(L64, L64 + 1, ER, TH, f32hex(64.0), T0, T1)
    fill += [f"v_cvt_f32_u32 v{KQ}, v{vQ}", f"v_mul_f32 v{T2}, {f32hex(32.0)}, v{KQ}"]
    fill += cexp(MR, MI, ER, TH, f"v{T2}", T0, T1)
    fill += [f"v_add_f32 v{T2}, {f32hex(16.0)}, v{T2}"]
    fill += cexp(MR + 1, MI + 1, ER, TH, f"v{T2}", T0, T1)
    fill += [f"v_cmp_eq_u32 vcc, 3, v{vQ}", f"v_cndmask_b32 v{M3}, 1.0, v{L32}, vcc", f"v_cndmask_b32 v{M3+1}, 0, v{L32+1}, vcc"]
    fill += [f"v_mul_f32 v{T2}, {f32hex(512.0)}, v{KQ}"]
    for i in range(4):
        fill += cexp(WL + 2 * i, WL + 2 * i + 1, ER, TH, f"v{T2}", T0, T1)
        if i < 3: fill += [f"v_add_f32 v{T2}, {f32hex(128.0)}, v{T2}"]
    fill += [f"v_mul_f32 v{T0}, v{vLre}, v{vLre}", f"v_fma_f32 v{T0}, v{vLim}, v{vLim}, v{T0}", f"v_rcp_f32 v{T0}, v{T0}",
             f"v_add_f32 v{T1}, -1.0, v{L1}", f"v_add_f32 v{T0}, v{T0}, v{T0}",
             f"v_mul_f32 v{T2}, v{T1}, v{vLre}", f"v_mul_f32 v{T3}, v{L1+1}, v{vLre}",
             f"v_fma_f32 v{T2}, v{L1+1}, v{vLim}, v{T2}", f"v_fma_f32 v{T3}, -v{T1}, v{vLim}, v{T3}",
             f"v_mul_f32 v{CF}, v{T2}, v{T0}", f"v_mul_f32 v{CF+1}, v{T3}, v{T0}"]
    wchain = cmul_pk(WT, CF, L1)
    for i in range(1, 16): wchain += cmul_pk(WT + 2 * i, WT + 2 * i - 2, L1)
    RA, IA, F, FB = 64, 96, [128, 160], [224, 232]
    def set_bases(step):
        slot = (step % 5) * 32768
        o = [f"v_add_u32 v{vA0}, {slot}, v{vAb}" if slot else f"v_mov_b32 v{vA0}, v{vAb}",
             f"v_xor_b32 v{vA1}, 64, v{vA0}", f"v_add_u32 v{vB0}, s{sWB}, v{vA0}", f"v_xor_b32 v{vB1}, 64, v{vB0}"]
        return o
    def g1_reads(g):
        step, ks = g // 2, g % 2
        o = []
        for ai in range(2):
            o.append((f"ds_read_b128 {vr(FB[ks]+4*ai,4)}, v{vB1 if ks else vB0} offset:{16384 + ai*2048}", f"b{g}_{ai}"))
        for m in range(8):
            o.append((f"ds_read_b128 {vr(F[ks]+4*m,4)}, v{vA1 if ks else vA0} offset:{m*2048}", f"a{g}_{m}"))
        return o
    def g1_mfmas(g):
        ks = g % 2
        o = []
        for m in range(8):
            for ai in range(2):
                D = (IA if ai else RA) + 4 * m
                Cs = "0" if g == 0 else vr(D, 4)
                o.append((f"v_mfma_f32_16x16x32_bf16 {vr(D,4)}, {vr(F[ks]+4*m,4)}, {vr(FB[ks]+4*ai,4)}, {Cs}", f"a{g}_{m}"))
        return o
    for t in set_bases(0): a(t)
    vm.wait("clr")
    for _ in range(PRE_FILL):
        if fill: a(fill.pop(0))
    st()
    a("s_barrier")
    st()
    for t, tag in g1_reads(0): a(t); lg.issue(tag)
    for g in range(18):
        nxt = g1_reads(g + 1) if g + 1 < 18 else []
        if g % 2 == 1:
            if g < 17:
                for t in set_bases(g // 2 + 1): a(t)
            else:
                lg.wait_all()
            a("s_barrier")
            if g == 13:
                a(f"buffer_load_ubyte v{vT}, v{vFL}, s[44:47], 0 offen sc1"); vm.issue("flg")
        for i, (t, tag) in enumerate(g1_mfmas(g)):
            lg.wait(tag)
            a(t)
            if nxt:
                rt, rtag = nxt.pop(0); a(rt); lg.issue(rtag)
            elif fill:
                a(fill.pop(0))
                if fill: a(fill.pop(0))
    while fill: a(fill.pop(0))
    st()
    def pr(i): return RA + 4 * (i // 2) + 2 * (i % 2)
    def pi(i): return IA + 4 * (i // 2) + 2 * (i % 2)
    for i in range(1, 16):
        a(pk_fma_b(pr(i), pr(i - 1), L1, False, pr(i)))
        a(pk_fma_b(pi(i), pi(i - 1), L1, False, pi(i)))
        a(pk_fma_b(pr(i), pi(i - 1), L1, True, pr(i), neg=True))
        a(pk_fma_b(pi(i), pr(i - 1), L1, True, pi(i)))
    a0r, a0i, a1r, a1i = pr(15), pi(15), pr(15) + 1, pi(15) + 1
    AR, AI, ZR, ZI, TR, TI, YR, YI, Z2R, Z2I, SR, SI = 40, 41, 42, 43, 44, 45, 46, 47, 48, 49, 50, 51
    EPR, EPI = 52, 54
    a(f"v_mov_b32 v{ZR}, 0"); a(f"v_mov_b32 v{ZI}, 0")
    a(f"v_mov_b32 v{Z2R}, 0"); a(f"v_mov_b32 v{Z2I}, 0")
    for s in cfma(AR, AI, L16, L16 + 1, a0r, a0i, a1r, a1i): a(s)
    a(f"v_mov_b32 v{TR}, v{AR}"); a(f"v_mov_b32 v{TI}, v{AI}")
    a(f"v_permlane16_swap_b32 v{ZR}, v{TR}"); a(f"v_permlane16_swap_b32 v{ZI}, v{TI}")
    for s in cfma(YR, YI, L32, L32 + 1, ZR, ZI, AR, AI): a(s)
    a(f"v_mov_b32 v{TR}, v{YR}"); a(f"v_mov_b32 v{TI}, v{YI}")
    a(f"v_permlane16_swap_b32 v{TR}, v{YR}"); a(f"v_permlane16_swap_b32 v{TI}, v{YI}")
    a(f"v_permlane32_swap_b32 v{Z2R}, v{YR}"); a(f"v_permlane32_swap_b32 v{Z2I}, v{YI}")
    for s in cfma(SR, SI, L64, L64 + 1, Z2R, Z2I, YR, YI): a(s)
    a(f"v_and_b32 v{SR}, -2, v{SR}"); a(f"v_and_b32 v{SI}, -2, v{SI}")
    a(f"buffer_store_dwordx2 v[{SR}:{SI}], v{vSO}, s[40:43], 0 offen sc1"); vm.issue("pub")
    st()
    for s in cfma(EPR, EPI, M3, M3 + 1, Z2R, Z2I, ZR, ZI): a(s)
    for s in cfma(EPR + 1, EPI + 1, L16, L16 + 1, EPR, EPI, a0r, a0i): a(s)
    RN = F[0]
    def pn(i): return RN + 4 * (i // 2) + 2 * (i % 2)
    for i in range(16):
        a(pk_mul_b(pn(i), pr(i), CF, False))
        a(pk_fma_b(pn(i), pi(i), CF, True, pn(i), neg=True))
        a(pk_mul_b(pi(i), pi(i), CF, False, neg=True))
        a(pk_fma_b(pi(i), pr(i), CF, True, pi(i), neg=True))
    for t in wchain: a(t)
    SL = F[1]; LOi = F[1] + 8
    for i in range(4):
        a(f"v_subrev_u32 v{LOi+i}, {(i+1)*4608}, v{vLO}")
    vm.wait("flg")
    a.label("ac_fl")
    a(f"v_cmp_ne_u32 vcc, 0, v{vT}")
    a(f"v_cmp_le_u32 s[60:61], s{sC}, v{vPC}")
    a(f"s_or_b64 vcc, vcc, s[60:61]")
    a(f"s_cmp_eq_u64 vcc, exec")
    a(f"s_cbranch_scc1 ac_poll")
    a(f"s_sleep 2")
    a(f"buffer_load_ubyte v{vT}, v{vFL}, s[44:47], 0 offen sc1")
    a("s_waitcnt vmcnt(0)")
    a(f"s_branch ac_fl")
    a.label("ac_poll")
    for i in range(4):
        a(f"buffer_load_dwordx2 {vr(SL+2*i,2)}, v{LOi+i}, s[40:43], 0 offen sc1")
    a("s_waitcnt vmcnt(0)"); vm.q = []
    a(f"v_max_u32 v{TR}, v{SL}, v{SL+1}")
    a(f"v_max3_u32 v{TR}, v{SL+2}, v{SL+3}, v{TR}")
    a(f"v_max3_u32 v{TI}, v{SL+4}, v{SL+5}, v{SL+6}")
    a(f"v_max3_u32 v{TR}, v{SL+7}, v{TI}, v{TR}")
    a(f"v_cmp_eq_u32 vcc, -1, v{TR}")
    a(f"s_cmp_eq_u64 vcc, 0")
    a(f"s_cbranch_scc1 ac_poll_ok")
    a(f"s_sleep {POLL_SLEEP}")
    a(f"s_branch ac_poll")
    a.label("ac_poll_ok")
    st()
    HR, HI = 56, 57
    a(f"v_mul_f32 v{HR}, v{WL}, v{SL}")
    a(f"v_mul_f32 v{HI}, v{WL}, v{SL+1}")
    a(f"v_fma_f32 v{HR}, -v{WL+1}, v{SL+1}, v{HR}")
    a(f"v_fma_f32 v{HI}, v{WL+1}, v{SL}, v{HI}")
    for i in range(1, 4):
        for s in cfma(HR, HI, WL + 2 * i, WL + 2 * i + 1, SL + 2 * i, SL + 2 * i + 1, HR, HI): a(s)
    for sw in ("16", "32"):
        a(f"v_mov_b32 v{TR}, v{HR}"); a(f"v_mov_b32 v{TI}, v{HI}")
        a(f"v_permlane{sw}_swap_b32 v{TR}, v{HR}"); a(f"v_permlane{sw}_swap_b32 v{TI}, v{HI}")
        a(f"v_add_f32 v{HR}, v{HR}, v{TR}"); a(f"v_add_f32 v{HI}, v{HI}, v{TI}")
    a(pk_fma_b(EPR, MR, HR, False, EPR))
    a(pk_fma_b(EPI, MR, HR, True, EPI))
    a(pk_fma_b(EPR, MI, HR, True, EPR, neg=True))
    a(pk_fma_b(EPI, MI, HR, False, EPI))
    a(f"s_mul_i32 s{sT0}, s{sC}, {2*36*4096}")
    a(f"s_lshl_b32 s{sT1}, s{sPG}, 12")
    a(f"s_add_u32 s{sT0}, s{sT0}, s{sT1}")
    a(f"s_add_u32 s{sT1}, s{sT0}, {36*4096}")
    PK = RA
    for half in range(2):
        for i in range(8 * half, 8 * half + 8):
            w = WT + 2 * i
            a(pk_fma_b(pn(i), EPR, w, False, pn(i)))
            a(pk_fma_b(pi(i), EPI, w, False, pi(i), neg=True))
            a(pk_fma_b(pn(i), EPI, w, True, pn(i), neg=True))
            a(pk_fma_b(pi(i), EPR, w, True, pi(i), neg=True))
        for arr, base in ((0, RN), (1, IA)):
            for sub in range(2):
                ist = 2 * sub + half
                d = PK + 16 * arr + 4 * ist
                for mm in range(4):
                    m = 4 * half + mm
                    a(f"v_cvt_pk_bf16_f32 v{d+mm}, v{base+4*m+sub}, v{base+4*m+2+sub}")
                a(f"buffer_store_dwordx4 {vr(d,4)}, v{vHO}, s[36:39], s{sT1 if arr else sT0} offen offset:{ist*1024} sc1")
    st()
    vR0, vR1, vRb, vEW = vSO, vP2, vHO, vFL
    a(f"s_lshr_b32 s{sKH}, s{sW}, 1")
    a(f"s_and_b32 s{sDH}, s{sW}, 1")
    vN = vPC
    a(f"v_and_b32 v{vT}, 1, v{vQ}")
    a(f"v_mul_u32_u24 v{vT}, 12, v{vT}")
    a(f"v_lshrrev_b32 v{vT2}, 2, v{vN}")
    a(f"v_add_u32 v{vT}, v{vT}, v{vT2}")
    a(f"v_lshlrev_b32 v{vLO}, 5, v{vT}")
    a(f"v_and_b32 v{vT}, 3, v{vN}")
    a(f"v_lshl_add_u32 v{vLO}, v{vT}, 3, v{vLO}")
    a(f"v_lshrrev_b32 v{vT}, 1, v{vQ}")
    a(f"v_lshl_add_u32 v{vLO}, v{vT}, 12, v{vLO}")
    a(f"s_lshl_b32 s{sT0}, s{sKH}, 14")
    a(f"v_add_u32 v{vLO}, s{sT0}, v{vLO}")
    vRb = vLO
    vEW2 = vB1
    a(f"v_and_b32 v{vT}, 7, v{vN}")
    a(f"v_xor_b32 v{vT}, v{vT}, v{vQ}")
    a(f"v_lshlrev_b32 v{vEW}, 8, v{vN}")
    a(f"v_lshl_add_u32 v{vEW}, v{vT}, 4, v{vEW}")
    a(f"s_mul_i32 s{sT0}, s{sKH}, {E_HALF}")
    a(f"s_lshl_b32 s{sT1}, s{sDH}, 7")
    a(f"s_add_u32 s{sT0}, s{sT0}, s{sT1}")
    a(f"v_add_u32 v{vEW}, s{sT0}, v{vEW}")
    a(f"v_xor_b32 v{vEW2}, 64, v{vEW}")
    a(f"v_add_u32 v{vB0}, s{sWB}, v{vAb}")
    a("s_waitcnt vmcnt(0)")
    st()
    a("s_barrier")
    CFR = 112
    def cf(i, ks, mt): return CFR + 16 * i + 8 * ks + 4 * mt
    for sg in range(3):
        a(f"v_add_u32 v{vA0}, {sg*65536}, v{vB0}") if sg else a(f"v_mov_b32 v{vA0}, v{vB0}")
        a(f"v_xor_b32 v{vA1}, 64, v{vA0}")
        for h in range(4):
            i = 4 * sg + h
            if i > 8: continue
            for ks in range(2):
                for mt in range(2):
                    a(f"ds_read_b128 {vr(cf(i,ks,mt),4)}, v{vA1 if ks else vA0} offset:{16384*h + 2048*mt}")
    a("s_waitcnt lgkmcnt(0)")
    a("s_barrier")
    st()
    ACC, HF = 16, [80, 96]
    def acc(nt, mt): return ACC + 8 * nt + 4 * mt
    def set2(stage):
        slot = (stage % 5) * 32768
        a(f"v_add_u32 v{vR0}, {slot}, v{vRb}") if slot else a(f"v_mov_b32 v{vR0}, v{vRb}")
        a(f"v_xor_b32 v{vR1}, 128, v{vR0}")
    def g2_units(g):
        stage, u = g // 4, g % 4
        if stage < 8: return [(u >> 1, 4 * (u & 1) + ist) for ist in range(4)]
        return [(ks, 2 * u + k) for k in range(2) for ks in range(2)]
    def g2_reads(g):
        o = []
        for j, (ks, nt) in enumerate(g2_units(g)):
            off = ks * 8192 + (nt & 3) * 1024 + (nt >> 2) * 512
            o.append((f"ds_read_b64_tr_b16 {vr(HF[g&1]+4*j,2)}, v{vR0} offset:{off}", f"x{g}_{j}"))
            o.append((f"ds_read_b64_tr_b16 {vr(HF[g&1]+4*j+2,2)}, v{vR1} offset:{off}", f"h{g}_{j}"))
        return o
    def g2_mfmas(g):
        stage = g // 4
        o = []
        for j, (ks, nt) in enumerate(g2_units(g)):
            for mt in range(2):
                D = acc(nt, mt)
                Cs = "0" if (stage == 0 and ks == 0) else vr(D, 4)
                o.append((f"v_mfma_f32_16x16x32_bf16 {vr(D,4)}, {vr(cf(stage,ks,mt),4)}, {vr(HF[g&1]+4*j,4)}, {Cs}", f"h{g}_{j}"))
        return o
    def ewrite(nt):
        for mt in range(2):
            a(f"ds_write_b128 v{vEW2 if mt else vEW}, {vr(acc(nt,mt),4)} offset:{nt*16*E_ROW}"); lg.issue("ew")
    set2(0)
    a("s_barrier")
    st()
    for t, tag in g2_reads(0): a(t); lg.issue(tag)
    for g in range(36):
        nxt = g2_reads(g + 1) if g + 1 < 36 else []
        if g % 4 == 3 and g < 35:
            set2(g // 4 + 1)
            a("s_barrier")
        for i, (t, tag) in enumerate(g2_mfmas(g)):
            lg.wait(tag)
            a(t)
            if nxt:
                rt, rtag = nxt.pop(0); a(rt); lg.issue(rtag)
            if g > 32 and i in (3, 7):
                lg.wait("ew")
                ewrite(2 * (g - 33) + (i >> 2))
    st()
    lg.wait("ew")
    ewrite(6); ewrite(7)
    a("s_waitcnt lgkmcnt(0)")
    a("s_barrier")
    st.dump()
    a("s_endpgm")

def gen_ah(a):
    vm = Ctr(a, "vmcnt", 63)
    st = St(a, 1); st()
    a("s_load_dwordx2 s[4:5], s[0:1], 0")
    a("s_load_dwordx8 s[8:15], s[0:1], 24")
    a("s_load_dwordx2 s[6:7], s[0:1], 64")
    a("s_load_dwordx4 s[16:19], s[0:1], 128")
    a("s_load_dwordx2 s[20:21], s[0:1], 144")
    sC, sS, sT0, sT1, sJ, sKO, sXB, sBB, sLB, sCB, sHB = range(48, 59)
    decode_cs(a, sC, sS, sT0, sT1)
    a(f"s_lshl_b32 s{sT0}, s{sT0}, 2")
    a(f"s_add_u32 s{sKO}, s{sS}, s{sT0}")
    a(f"s_cmp_ge_u32 s{sKO}, 9")
    a(f"s_cselect_b32 s{sT0}, 9, 0")
    a(f"s_sub_u32 s{sKO}, s{sKO}, s{sT0}")
    a(f"s_lshl_b32 s{sKO}, s{sKO}, 7")
    a(f"s_and_b32 s{sJ}, s{sW}, 3")
    vL, vT, vT2, vCH, vLR = 1, 2, 3, 4, 5
    vX, vB, vC = 8, 12, 16
    a(f"v_and_b32 v{vL}, 63, v0")
    a(f"v_lshrrev_b32 v{vLR}, 3, v{vL}")
    a(f"v_lshrrev_b32 v{vT}, 4, v{vL}")
    a(f"v_and_b32 v{vCH}, 7, v{vL}")
    a(f"v_xor_b32 v{vCH}, v{vCH}, v{vT}")
    a(f"v_lshlrev_b32 v{vCH}, 4, v{vCH}")
    a(f"v_lshrrev_b32 v{vT}, 5, v{vL}")
    a(f"v_lshlrev_b32 v{vT2}, 5, v{vT}")
    a(f"v_bfe_u32 v{vT}, v{vL}, 3, 1")
    a(f"v_lshl_add_u32 v{vT2}, v{vT}, 4, v{vT2}")
    a(f"v_bfe_u32 v{vT}, v{vL}, 4, 1")
    a(f"v_add_u32 v{vT2}, v{vT2}, v{vT}")
    a(f"v_mul_u32_u24 v{vT2}, 1152, v{vT2}")
    a(f"v_xor_b32 v{vT}, 64, v{vCH}")
    a(f"v_add_u32 v{vX}, v{vT2}, v{vCH}")
    a(f"v_add_u32 v{vX+1}, v{vT2}, v{vT}")
    a(f"v_add_u32 v{vX+2}, {2304-2048}, v{vX}")
    a(f"v_add_u32 v{vX+3}, {64*1152+2304-3072}, v{vX+1}")
    a(f"v_add_u32 v{vX+1}, {64*1152-1024}, v{vX+1}")
    a(f"v_mul_u32_u24 v{vT2}, 1152, v{vLR}")
    a(f"v_add_u32 v{vB}, v{vT2}, v{vCH}")
    a(f"v_add_u32 v{vB+1}, v{vT2}, v{vT}")
    a(f"v_add_u32 v{vB+1}, {8*1152-1024}, v{vB+1}")
    a(f"s_mul_i32 s{sXB}, s{sC}, {128*1152}")
    a(f"s_mul_i32 s{sT0}, s{sJ}, {4*1152}")
    a(f"s_add_u32 s{sXB}, s{sXB}, s{sT0}")
    a(f"s_lshl_b32 s{sT0}, s{sS}, 2")
    a(f"s_add_u32 s{sT0}, s{sT0}, s{sJ}")
    a(f"s_mul_i32 s{sBB}, s{sT0}, {16*1152}")
    a(f"s_lshl_b32 s{sLB}, s{sJ}, 12")
    a("s_waitcnt lgkmcnt(0)")
    srd(a, 24, 4, 2048 * 1152)
    srd(a, 28, 8, 576 * 1152)
    srd(a, 32, 10, 576 * 1152)
    def adv(reg):
        a(f"s_add_u32 s{reg}, s{reg}, 128")
        a(f"s_cmp_ge_u32 s{reg}, 1152")
        a(f"s_cselect_b32 s{reg}, 0, s{reg}")
    def issue_g1(i):
        slot = (i % 5) * 32768
        a(f"s_add_u32 s{sT0}, s{sXB}, s{sKO}")
        a(f"s_add_u32 m0, s{sLB}, {slot}")
        a(f"s_add_u32 s{sT1}, s{sBB}, s{sKO}")
        for e in range(4):
            a(f"buffer_load_dwordx4 v{vX+e}, s[24:27], s{sT0} offen offset:{e*1024} lds"); vm.issue(f"i{i}")
        for ai in range(2):
            a(f"s_add_u32 m0, s{sLB}, {slot + 16384 + ai*2048}")
            for e in range(2):
                a(f"buffer_load_dwordx4 v{vB+e}, s[{28+4*ai}:{31+4*ai}], s{sT1} offen offset:{e*1024} lds"); vm.issue(f"i{i}")
        adv(sKO)
    st()
    issue_g1(0)
    vFA, vFP, vONE, vDM, vFW, vFR = 20, 21, 22, 23, 28, 29
    srd(a, 60, 20, 16 * 128, WS_F)
    a(f"s_lshl_b32 s{sT0}, s{sC}, 7")
    a(f"s_lshl_b32 s{sT1}, s{sS}, 2")
    a(f"s_add_u32 s{sT1}, s{sT1}, s{sT0}")
    a(f"v_mov_b32 v{vFW}, s{sT1}")
    a(f"v_mov_b32 v{vT}, {OOB}")
    a(f"v_cmp_eq_u32 vcc, 256, v0")
    a(f"v_mov_b32 v{vONE}, 0")
    a(f"v_cndmask_b32 v{vFW}, v{vT}, v{vFW}, vcc")
    a(f"buffer_store_dword v{vONE}, v{vFW}, s[60:63], 0 offen sc1"); vm.issue("i0")
    for i in range(1, XA): issue_g1(i)
    st()
    a(f"v_min_u32 v{vFP}, 8, v{vL}")
    a(f"v_lshl_add_u32 v{vFR}, v{vFP}, 2, s{sT0}") if False else None
    a(f"s_lshl_b32 s{sT0}, s{sC}, 7")
    a(f"v_lshl_add_u32 v{vFR}, v{vFP}, 2, s{sT0}")
    a(f"v_lshl_add_u32 v{vFP}, v{vFP}, 4, s{sC}")
    a(f"s_lshl_b32 s{sT0}, s{sS}, 4")
    a(f"s_add_u32 s{sT0}, s{sT0}, s{sC}")
    a(f"v_mov_b32 v{vFA}, s{sT0}")
    a(f"v_cndmask_b32 v{vFA}, v{vT}, v{vFA}, vcc")
    a(f"v_mov_b32 v{vDM}, 1")
    srd(a, 40, 18, 256)
    for s in range(9):
        vm.wait(f"i{s}")
        a("s_barrier")
        if s == 0:
            a(f"buffer_store_byte v{vDM}, v{vFA}, s[40:43], 0 offen sc1"); vm.issue("flag")
            st()
        if s + XA <= 8: issue_g1(s + XA)
    sKC = 59
    a(f"s_cmp_lt_u32 s{sJ}, 2")
    a(f"s_cselect_b32 s36, s12, s14")
    a(f"s_cselect_b32 s37, s13, s15")
    a(f"s_mov_b32 s38, {576*1152}")
    a(f"s_mov_b32 s39, 0x00020000")
    srd(a, 44, 20, H_BYTES, WS_H)
    a(f"s_lshl_b32 s{sKC}, s{sS}, 7")
    a(f"s_lshl_b32 s{sT0}, s{sS}, 6")
    a(f"s_and_b32 s{sT1}, s{sJ}, 1")
    a(f"s_lshl_b32 s{sT1}, s{sT1}, 5")
    a(f"s_add_u32 s{sT0}, s{sT0}, s{sT1}")
    a(f"s_mul_i32 s{sCB}, s{sT0}, 1152")
    a(f"v_mov_b32 v{vC}, v{vB}")
    a(f"v_mov_b32 v{vC+1}, v{vB+1}")
    a(f"v_add_u32 v{vC+2}, {16*1152-2048}, v{vB}")
    a(f"v_add_u32 v{vC+3}, {16*1152-2048}, v{vB+1}")
    a(f"v_lshlrev_b32 v{vDM}, 4, v{vL}")
    vXO, vOO, vER, vDO, vER2 = 24, 25, 26, 27, 30
    a(f"v_lshrrev_b32 v{vT}, 4, v{vL}")
    a(f"s_lshl_b32 s{sT0}, s{sC}, 7")
    a(f"s_lshr_b32 s{sT1}, s{sJ}, 1")
    a(f"s_lshl_b32 s{sT1}, s{sT1}, 6")
    a(f"s_add_u32 s{sT0}, s{sT0}, s{sT1}")
    a(f"s_and_b32 s{sT1}, s{sJ}, 1")
    a(f"s_lshl_b32 s{sT1}, s{sT1}, 4")
    a(f"s_add_u32 s{sT0}, s{sT0}, s{sT1}")
    a(f"v_add_u32 v{vT2}, s{sT0}, v{vT}")
    a(f"v_and_b32 v{vCH}, 15, v{vL}")
    a(f"s_lshl_b32 s{sT1}, s{sS}, 4")
    a(f"v_add_u32 v{vDO}, s{sT1}, v{vCH}")
    a(f"v_mul_u32_u24 v{vXO}, 1152, v{vT2}")
    a(f"v_lshl_add_u32 v{vXO}, v{vDO}, 3, v{vXO}")
    a(f"v_mul_u32_u24 v{vOO}, 4608, v{vT2}")
    a(f"v_lshl_add_u32 v{vOO}, v{vDO}, 4, v{vOO}")
    a(f"v_lshlrev_b32 v{vDO}, 3, v{vDO}")
    a(f"v_xor_b32 v{vCH}, v{vCH}, v{vT}")
    a(f"v_lshlrev_b32 v{vER}, 8, v{vT}")
    a(f"v_lshl_add_u32 v{vER}, v{vCH}, 4, v{vER}")
    a(f"s_lshl_b32 s{sT0}, s{sJ}, 13")
    a(f"v_add_u32 v{vER}, s{sT0}, v{vER}")
    a(f"v_xor_b32 v{vER2}, 64, v{vER}")
    def trow(k): return 8 * (k >> 2) + 32 * ((k >> 1) & 1) + 4 * (k & 1)
    XS, DS, DF, SK = 32, 48, 52, 64
    a(f"buffer_load_ubyte v{vLR}, v{vFP}, s[40:43], 0 offen sc1"); vm.issue("sk")
    a(f"global_load_dwordx2 {vr(DS,2)}, v{vDO}, s[6:7]"); vm.issue("sk")
    for k in range(8):
        a(f"s_mov_b32 s{sT0}, {trow(k)*1152}")
        a(f"buffer_load_dwordx2 {vr(XS+2*k,2)}, v{vXO}, s[24:27], s{sT0} offen"); vm.issue("sk")
    a("s_barrier")
    st()
    for i in range(9):
        a(f"s_add_u32 s{sT0}, s{sCB}, s{sKC}")
        a(f"s_add_u32 m0, s{sLB}, {16384*i}")
        adv(sKC)
        for e in range(4):
            a(f"buffer_load_dwordx4 v{vC+e}, s[36:39], s{sT0} offen offset:{e*1024} lds"); vm.issue("c")
    srd(a, 28, 16, 2048 * 4608)
    a(f"s_mul_i32 s{sHB}, s{sC}, {2*36*4096}")
    a(f"s_lshr_b32 s{sT0}, s{sJ}, 1")
    a(f"s_mul_i32 s{sT0}, s{sT0}, {36*4096}")
    a(f"s_add_u32 s{sHB}, s{sHB}, s{sT0}")
    a(f"s_and_b32 s{sT0}, s{sJ}, 1")
    a(f"s_lshl_b32 s{sT0}, s{sT0}, 13")
    a(f"s_add_u32 s{sHB}, s{sHB}, s{sT0}")
    a(f"s_lshl_b32 s{sKO}, s{sS}, 14")
    a(f"s_lshl_b32 s{sLB}, s{sJ}, 13")
    vm.wait("sk")
    a(f"v_lshlrev_b32 v{DF}, 16, v{DS}")
    a(f"v_and_b32 v{DF+1}, 0xffff0000, v{DS}")
    a(f"v_lshlrev_b32 v{DF+2}, 16, v{DS+1}")
    a(f"v_and_b32 v{DF+3}, 0xffff0000, v{DS+1}")
    for k in range(8):
        x = XS + 2 * k; d = SK + 4 * k
        a(f"v_lshlrev_b32 v{d}, 16, v{x}")
        a(f"v_and_b32 v{d+1}, 0xffff0000, v{x}")
        a(f"v_lshlrev_b32 v{d+2}, 16, v{x+1}")
        a(f"v_and_b32 v{d+3}, 0xffff0000, v{x+1}")
        a(f"v_pk_mul_f32 {vr(d,2)}, {vr(d,2)}, {vr(DF,2)}")
        a(f"v_pk_mul_f32 {vr(d+2,2)}, {vr(d+2,2)}, {vr(DF+2,2)}")
        for r in range(4):
            a(f"v_cvt_pk_bf16_f32 v{d+r}, 0, v{d+r}")
    a.label("ah_clr")
    a(f"v_cmp_eq_u32 vcc, 0, v{vLR}")
    a(f"s_cmp_eq_u64 vcc, 0")
    a(f"s_cbranch_scc1 ah_clr_ok")
    a(f"s_sleep 2")
    a(f"buffer_load_ubyte v{vLR}, v{vFP}, s[40:43], 0 offen sc1")
    a("s_waitcnt vmcnt(0)")
    a(f"s_branch ah_clr")
    a.label("ah_clr_ok")
    a(f"v_mov_b32 v{vONE}, 1")
    vm.wait_all()
    st()
    a("s_barrier")
    a(f"s_cmp_lg_u32 s{sJ}, 0")
    a(f"s_cbranch_scc1 ah_poll_ok")
    a(f"buffer_store_dword v{vONE}, v{vFW}, s[60:63], 0 offen sc1")
    a.label("ah_poll")
    a(f"buffer_load_dword v{vT}, v{vFR}, s[60:63], 0 offen sc1")
    a("s_waitcnt vmcnt(0)")
    a(f"v_cmp_ne_u32 vcc, 1, v{vT}")
    a(f"s_cmp_lg_u64 vcc, 0")
    a(f"s_cbranch_scc1 ah_poll")
    a.label("ah_poll_ok")
    st()
    a("s_barrier")
    st()
    def issue_h(i):
        slot = (i % 5) * 32768
        a(f"s_add_u32 s{sT0}, s{sHB}, s{sKO}")
        a(f"s_add_u32 s{sT1}, s{sT0}, 4096")
        for b in range(2):
            a(f"s_add_u32 m0, s{sLB}, {slot + 4096*b}")
            if b == 0:
                a(f"s_add_u32 s{sKO}, s{sKO}, 16384")
            for e in range(4):
                a(f"buffer_load_dwordx4 v{vDM}, s[44:47], s{sT1 if b else sT0} offen offset:{e*1024} sc1 lds"); vm.issue(f"h{i}")
        a(f"s_cmp_ge_u32 s{sKO}, {9*16384}")
        a(f"s_cselect_b32 s{sKO}, 0, s{sKO}")
    for i in range(XA): issue_h(i)
    for s in range(9):
        vm.wait(f"h{s}")
        a("s_barrier")
        if s == 0: st()
        if s + XA <= 8: issue_h(s + XA)
    a("s_barrier")
    st()
    RB = 96
    for k in range(8):
        for h in range(2):
            a(f"ds_read_b128 {vr(RB+8*k+4*h,4)}, v{vER2 if k & 1 else vER} offset:{h*E_HALF + 4*k*E_ROW}")
        if k == 5: a("s_waitcnt lgkmcnt(8)")
    for k in range(8):
        a(f"s_waitcnt lgkmcnt({min(14-2*k, 15)})")
        d = SK + 4 * k
        for h in range(2):
            a(f"v_pk_add_f32 {vr(d,2)}, {vr(d,2)}, {vr(RB+8*k+4*h,2)}")
            a(f"v_pk_add_f32 {vr(d+2,2)}, {vr(d+2,2)}, {vr(RB+8*k+4*h+2,2)}")
        a(f"s_mov_b32 s{sT0}, {trow(k)*4608}")
        a(f"buffer_store_dwordx4 {vr(d,4)}, v{vOO}, s[28:31], s{sT0} offen")
    st.dump()
    a("s_endpgm")

U_ST = 4160
def ubase(w): return w * 16640 + (w >> 1) * 16
U1, KB, K_CH = 0, 66624, 4608
TB = KB + 4 * K_CH
T_CH, T_ROW = 18432, 288
assert TB + 4 * T_CH <= LDS and TB % 256 == 64 or True
Y_OFF = [0, 4160]

def b_group(a, sG, sT0):
    a(f"s_sub_u32 s{sT0}, s2, {NA}")
    a(f"s_and_b32 s{sG}, s{sT0}, 7")
    a(f"s_mul_i32 s{sG}, s{sG}, 9")
    a(f"s_lshr_b32 s{sT0}, s{sT0}, 3")
    a(f"s_add_u32 s{sG}, s{sG}, s{sT0}")

def s_ubase(a, dst, sJ, tmp):
    a(f"s_mul_i32 s{dst}, s{sJ}, 16640")
    a(f"s_lshr_b32 s{tmp}, s{sJ}, 1")
    a(f"s_lshl_b32 s{tmp}, s{tmp}, 4")
    a(f"s_add_u32 s{dst}, s{dst}, s{tmp}")

class KGen:
    def __init__(self, a, R0, sJ, sT0, sT1, vL, vI, vQ):
        self.a = a; self.R0 = R0; self.sJ = sJ; self.sT0 = sT0; self.sT1 = sT1
        self.vL, self.vI, self.vQ = vL, vI, vQ
        self.ex, self.tiles = xrows()
        self.rowidx = {e: i for i, e in enumerate(self.ex)}
        r = R0
        self.PAR = r; r += 4
        self.LDT = r; r += 1
        self.vTW = r; r += 1
        self.vXA = r; r += 5
        self.vK = r; r += 3
        self.ER, self.TH, self.DT, self.T0, self.T1 = range(r, r + 5); r += 5
        r += r % 2
        self.CC = r; r += 2
        self.P = r; r += 34
        self.Q = r - 2; r += 14
        self.TM = r; r += 8
        self.CV = r; r += 8
        r = (r + 3) // 4 * 4
        self.KA = r; r += 16
        self.XF = r; r += 40
        self.end = r
    def load_params(self, vm, sCH, rnd_tag):
        a = self.a; t0 = self.T0; t1 = self.T1
        a(f"s_lshl_b32 s{self.sT0}, s{sCH}, 8")
        a(f"v_lshl_add_u32 v{t0}, v{self.vL}, 2, s{self.sT0}")
        a(f"s_lshl_b32 s{self.sT0}, s{sCH}, 1")
        a(f"v_mov_b32 v{t1}, s{self.sT0}")
        for k in range(4):
            a(f"global_load_dword v{self.PAR+k}, v{t0}, s[{6+2*k}:{7+2*k}]"); vm.issue(rnd_tag)
        a(f"global_load_ushort v{self.LDT}, v{t1}, s[14:15]"); vm.issue(rnd_tag)
    def addresses(self):
        a = self.a; sT0 = self.sT0; vT, vT2 = self.T0, self.T1; vXA = self.vXA; vI, vQ, vL = self.vI, self.vQ, self.vL
        a(f"s_mul_i32 s{sT0}, s{self.sJ}, {T_CH}")
        a(f"s_add_u32 s{sT0}, s{sT0}, {TB}")
        a(f"v_lshl_add_u32 v{self.vTW}, v{vL}, 2, s{sT0}")
        a(f"v_lshl_add_u32 v{vT}, v{vQ}, 4, s{sT0}")
        a(f"v_mul_u32_u24 v{vT2}, {T_ROW}, v{vI}")
        a(f"v_add_u32 v{vXA}, v{vT}, v{vT2}")
        a(f"v_add_u32 v{vXA+4}, {47*T_ROW}, v{vXA}")
        a(f"v_cmp_gt_u32 vcc, 8, v{vI}")
        a(f"v_lshlrev_b32 v{self.ER}, 2, v{vI}")
        a(f"v_and_b32 v{self.ER}, 31, v{self.ER}")
        for t in (1, 2, 3):
            rows = [self.rowidx[e] for e in self.tiles[t]]
            b = min(rows); nib = [r - b for r in rows]
            lo = sum(nib[i] << (4 * i) for i in range(8)); hi = sum(nib[8 + i] << (4 * i) for i in range(8))
            a(f"v_mov_b32 v{vXA+t}, {lo:#x}")
            a(f"v_mov_b32 v{vT2}, {hi:#x}")
            a(f"v_cndmask_b32 v{vXA+t}, v{vT2}, v{vXA+t}, vcc")
            a(f"v_bfe_u32 v{vXA+t}, v{vXA+t}, v{self.ER}, 4")
            a(f"v_mul_u32_u24 v{vXA+t}, {T_ROW}, v{vXA+t}")
            a(f"v_add_u32 v{vXA+t}, {b*T_ROW}, v{vXA+t}")
            a(f"v_add_u32 v{vXA+t}, v{vXA+t}, v{vT}")
        a(f"s_mul_i32 s{sT0}, s{self.sJ}, {K_CH}")
        a(f"s_add_u32 s{sT0}, s{sT0}, {KB+480}")
        a(f"v_lshlrev_b32 v{vT}, 5, v{vI}")
        a(f"v_sub_u32 v{self.TH}, s{sT0}, v{vT}")
        a(f"v_lshlrev_b32 v{vT}, 3, v{vQ}")
        a(f"v_sub_u32 v{self.vK}, v{self.TH}, v{vT}")
        a(f"v_lshrrev_b32 v{vT}, 1, v{vQ}")
        a(f"v_lshlrev_b32 v{vT}, 9, v{vT}")
        a(f"v_and_b32 v{vT2}, 1, v{vQ}")
        a(f"v_lshl_add_u32 v{vT}, v{vT2}, 4, v{vT}")
        a(f"v_sub_u32 v{self.vK+1}, v{self.TH}, v{vT}")
        a(f"v_lshlrev_b32 v{vT}, 9, v{vQ}")
        a(f"v_sub_u32 v{self.vK+2}, v{self.TH}, v{vT}")
    def setup(self, ps):
        o = []
        ER, TH, DT, T0, T1, CC, P, Q, PAR = self.ER, self.TH, self.DT, self.T0, self.T1, self.CC, self.P, self.Q, self.PAR
        if ps == 0:
            o += [f"v_lshlrev_b32 v{DT}, 16, v{self.LDT}", f"v_mul_f32 v{DT}, {LOG2E}, v{DT}", f"v_exp_f32 v{DT}, v{DT}"]
        def unp(d, s): return f"v_lshlrev_b32 v{d}, 16, v{s}" if ps == 0 else f"v_and_b32 v{d}, 0xffff0000, v{s}"
        o += [unp(ER, PAR), unp(TH, PAR + 1), unp(CC, PAR + 2), unp(CC + 1, PAR + 3)]
        if ps == 0: o += [f"v_cvt_pk_bf16_f32 v{DT}, 0, v{DT}"]
        o += [f"v_mul_f32 v{ER}, {LOG2E}, v{ER}", f"v_exp_f32 v{ER}, v{ER}", f"v_mul_f32 v{TH}, v{TH}, v{DT}",
              f"v_cvt_pk_bf16_f32 v{ER}, 0, v{ER}", f"v_mul_f32 v{TH}, {INV2PI}, v{TH}", f"v_mul_f32 v{ER}, v{ER}, v{DT}",
              f"v_mul_f32 v{ER}, 0xbfb8aa3b, v{ER}", f"v_add_f32 v{T0}, v{DT}, v{DT}",
              f"v_mul_f32 v{CC}, v{CC}, v{T0}", f"v_mul_f32 v{CC+1}, v{CC+1}, v{T0}"]
        o += cexp(P + 2, P + 3, ER, TH, None, T0, T1)
        o += cexp(P + 32, P + 33, ER, TH, f32hex(16.0), T0, T1)
        o += cexp(Q + 2, Q + 3, ER, TH, f32hex(256.0), T0, T1)
        return o
    def tables(self, ps):
        a = self.a; P, Q, TM, CC = self.P, self.Q, self.TM, self.CC; rowidx = self.rowidx
        cvn = [0]
        def put(row, pair, neg=False):
            c = self.CV + cvn[0] % 8; cvn[0] += 1
            s1 = f"-v{pair+1}" if neg else f"v{pair+1}"
            a(f"v_cvt_pk_bf16_f32 v{c}, v{pair}, {s1}")
            a(f"ds_write_b32 v{self.vTW}, v{c} offset:{row*T_ROW}")
        if ps == 0:
            a(f"v_mov_b32 v{self.T0}, 0x3f80")
            a(f"ds_write_b32 v{self.vTW}, v{self.T0} offset:{rowidx[0]*T_ROW}")
        put(rowidx[1], P + 2)
        for k in range(2, 16):
            for s in cmul_pk(P + 2 * k, P + 2 * k - 2, P + 2): a(s)
            put(rowidx[k], P + 2 * k)
        put(47, CC, neg=True)
        prev = CC
        for b in range(1, 16):
            d = TM + 2 * (b % 2)
            for s in cmul_pk(d, prev, P + 32): a(s)
            put(47 + b, d, neg=True); prev = d
        put(rowidx[256], Q + 2)
        for n in range(2, 8):
            for s in cmul_pk(Q + 2 * n, Q + 2 * n - 2, Q + 2): a(s)
            put(rowidx[256 * n], Q + 2 * n)
        cnt = 0
        for e in self.ex:
            if e > 256 and e % 256:
                d = TM + 4 + 2 * (cnt % 2); cnt += 1
                for s in cmul_pk(d, Q + 2 * (e // 256), P + 2 * (e % 256)): a(s)
                put(rowidx[e], d)
    def mm(self, ps, filler):
        a = self.a; XF, KA = self.XF, self.KA
        def rd(ks):
            for t in range(5):
                a(f"ds_read_b128 {vr(XF+20*(ks%2)+4*t,4)}, v{self.vXA+t} offset:{ks*64}")
        rd(0); rd(1)
        for ks in range(4):
            for _ in range(10):
                if filler: a(filler.pop(0))
            a(f"s_waitcnt lgkmcnt({5 if ks < 3 else 0})")
            for t in range(4):
                Cs = "0" if (ps == 0 and ks == 0) else vr(KA + 4 * t, 4)
                a(f"v_mfma_f32_16x16x32_bf16 {vr(KA+4*t,4)}, {vr(XF+20*(ks%2)+4*t,4)}, {vr(XF+20*(ks%2)+16,4)}, {Cs}")
            if ks + 2 < 4: rd(ks + 2)
        while filler: a(filler.pop(0))
    def run(self, st=lambda: None):
        a = self.a
        for s in self.setup(0): a(s)
        st()
        self.tables(0)
        st()
        self.mm(0, self.setup(1))
        st()
        self.tables(1)
        self.mm(1, [])
    def pack(self):
        a = self.a; W = self.XF; KA = self.KA
        for t in range(2):
            k = KA + 4 * t
            a(f"v_cvt_pk_bf16_f32 v{W+2*t}, v{k+3}, v{k+2}")
            a(f"v_cvt_pk_bf16_f32 v{W+2*t+1}, v{k+1}, v{k}")
        k = KA + 8
        for j, (x, y) in enumerate(((2, 2), (1, 1), (1, 0), (0, 0))):
            a(f"v_cvt_pk_bf16_f32 v{W+4+j}, v{k+x}, v{k+y}")
        k = KA + 12
        for j, (x, y) in enumerate(((2, 2), (2, 2), (1, 1), (1, 1), (1, 1), (1, 0), (0, 0), (0, 0))):
            a(f"v_cvt_pk_bf16_f32 v{W+8+j}, v{k+x}, v{k+y}")
    def write(self):
        a = self.a; W = self.XF
        for t in range(2):
            a(f"ds_write_b64 v{self.vK}, {vr(W+2*t,2)} offset:{2*(2044-240-256*t)}")
        a(f"ds_write_b128 v{self.vK+1}, {vr(W+4,4)} offset:{2*(2040-240-512)}")
        a(f"ds_write_b128 v{self.vK+2}, {vr(W+8,4)} offset:{2*(2032-240-1024)}")
        a(f"ds_write_b128 v{self.vK+2}, {vr(W+12,4)} offset:{2*(2032-240-1024)+16}")

def local_ch(a, dst, sG, sJ, rnd, tmp):
    a(f"s_lshr_b32 s{tmp}, s{sJ}, 1")
    a(f"s_lshl_b32 s{tmp}, s{tmp}, 1")
    a(f"s_add_u32 s{tmp}, s{tmp}, s{sJ}")
    a(f"s_lshl_b32 s{dst}, s{sG}, 3")
    a(f"s_add_u32 s{dst}, s{dst}, s{tmp}")
    if rnd: a(f"s_add_u32 s{dst}, s{dst}, {2*rnd}")

def gen_bc(a):
    vm = Ctr(a, "vmcnt", 63)
    st = St(a, 2); st()
    a("s_load_dwordx8 s[4:11], s[0:1], 72")
    a("s_load_dwordx4 s[12:15], s[0:1], 104")
    sG, sT0, sT1, sCH, sUB = 48, 49, 50, 51, 52
    b_group(a, sG, sT0)
    local_ch(a, sCH, sG, sW, 0, sT0)
    vL, vI, vQ, vT, vT2, vAR, vBR, vYW = range(1, 9)
    a(f"v_and_b32 v{vL}, 63, v0")
    a(f"v_and_b32 v{vI}, 15, v0")
    a(f"v_lshrrev_b32 v{vQ}, 4, v{vL}")
    kg = KGen(a, 12, sW, sT0, sT1, vL, vI, vQ)
    a("s_waitcnt lgkmcnt(0)")
    kg.load_params(vm, sCH, "par")
    kg.addresses()
    a(f"v_lshl_add_u32 v{vBR}, v{vQ}, 4, v{kg.TH}")
    s_ubase(a, sUB, sW, sT0)
    a(f"v_sub_u32 v{vT}, 3, v{vI}")
    a(f"v_and_b32 v{vT}, 3, v{vT}")
    a(f"v_add3_u32 v{vT2}, v{vI}, v{vT}, 1")
    a(f"v_lshl_add_u32 v{vT2}, v{vQ}, 3, v{vT2}")
    a(f"v_mul_u32_u24 v{vAR}, {U_ST}, v{vT}")
    a(f"v_lshl_add_u32 v{vAR}, v{vT2}, 1, v{vAR}")
    a(f"v_add_u32 v{vAR}, s{sUB}, v{vAR}")
    a(f"v_lshlrev_b32 v{vYW}, 5, v{vI}")
    a(f"v_lshl_add_u32 v{vYW}, v{vQ}, 3, v{vYW}")
    a(f"v_add_u32 v{vYW}, s{sUB}, v{vYW}")
    Z = kg.XF
    for i in range(4): a(f"v_mov_b32 v{Z+i}, 0")
    a(f"s_mul_i32 s{sT0}, s{sW}, {K_CH}")
    a(f"s_add_u32 s{sT0}, s{sT0}, {KB}")
    a(f"v_min_u32 v{vT}, 29, v{vL}")
    a(f"v_lshl_add_u32 v{vT}, v{vT}, 4, s{sT0}")
    a(f"ds_write_b128 v{vT}, {vr(Z,4)} offset:4096")
    st()
    vm.wait("par")
    st()
    kg.run(st); kg.pack(); kg.write()
    a("s_waitcnt lgkmcnt(0)")
    st()
    a("s_barrier")
    st()
    ACC = 12; AF = [48, 112]; BF = [80, 144]; YP = 176
    def conv(tiles, hooks={}):
        nmax = max(tiles)
        pairs = [(m, n - m) for m in range(8) for n in tiles if n >= m]
        ms = sorted(set(m for m, _ in pairs)); ns = sorted(set(n1 for _, n1 in pairs))
        def reads(dp):
            o = []
            s = dp % 2
            order = []
            for k in range(max(len(ms), len(ns))):
                if k < len(ns): order.append(("b", ns[k]))
                if k < len(ms): order.append(("a", ms[k]))
            order = [("a", ms[0])] + [("b", n1) for n1 in ns] + [("a", m) for m in ms[1:]]
            for kind, x in order:
                if kind == "b":
                    o.append(f"ds_read_b128 {vr(BF[s]+4*x,4)}, v{vBR} offset:{2*(1792-256*x)+64*dp}")
                else:
                    off = 64 * (dp + 8 * x)
                    o.append(f"ds_read_b64 {vr(AF[s]+4*x,2)}, v{vAR} offset:{off}")
                    o.append(f"ds_read_b64 {vr(AF[s]+4*x+2,2)}, v{vAR} offset:{off+8}")
            return o
        for r in reads(0): a(r)
        started = set()
        for dp in range(8):
            a("s_waitcnt lgkmcnt(0)")
            if dp in hooks: hooks[dp]()
            nxt = reads(dp + 1) if dp < 7 else []
            per = -(-len(nxt) // max(1, len(pairs) - 4))
            s = dp % 2
            for (m, n1) in pairs:
                D = ACC + 4 * (m + n1)
                Cs = vr(D, 4) if D in started else "0"
                started.add(D)
                a(f"v_mfma_f32_16x16x32_bf16 {vr(D,4)}, {vr(AF[s]+4*m,4)}, {vr(BF[s]+4*n1,4)}, {Cs}")
                for _ in range(per):
                    if nxt: a(nxt.pop(0))
            assert not nxt
    def ystore(tiles, rnd):
        for n in tiles:
            y = ACC + 4 * n
            a(f"v_cvt_pk_bf16_f32 v{YP+2*n}, v{y}, v{y+1}")
            a(f"v_cvt_pk_bf16_f32 v{YP+2*n+1}, v{y+2}, v{y+3}")
            a(f"ds_write_b64 v{vYW}, {vr(YP+2*n,2)} offset:{Y_OFF[rnd] + 512*n}")
        a("s_waitcnt lgkmcnt(0)")
    conv(list(range(8)), {6: lambda: a("s_barrier")})
    st()
    ystore(range(8), 0)
    a(f"v_add_u32 v{vAR}, {TB}, v{vAR}")
    a("s_barrier")
    a("s_barrier")
    st()
    conv([4, 5, 6, 7])
    ystore([4, 5, 6, 7], 1)
    a("s_barrier")
    st()
    conv([0, 1, 2, 3])
    ystore([0, 1, 2, 3], 1)
    a("s_barrier")
    st.dump()
    a("s_endpgm")

def gen_bh(a):
    vm = Ctr(a, "vmcnt", 63)
    st = St(a, 3); st()
    a("s_load_dwordx16 s[4:19], s[0:1], 72")
    sG, sT0, sT1, sCH, sJ, sSEL0, sSEL1 = 48, 49, 50, 51, 52, 53, 54
    b_group(a, sG, sT0)
    a(f"s_and_b32 s{sJ}, s{sW}, 3")
    local_ch(a, sCH, sG, sJ, 1, sT0)
    vL, vI, vQ, vT, vT2, vUO, vUH, vUW, vRG, vHF, vYR, vOO = range(1, 13)
    a(f"v_and_b32 v{vL}, 63, v0")
    a(f"v_and_b32 v{vI}, 15, v0")
    a(f"v_lshrrev_b32 v{vQ}, 4, v{vL}")
    a(f"v_bfe_u32 v{vRG}, v0, 1, 7")
    a(f"v_and_b32 v{vHF}, 1, v0")
    a(f"v_mul_u32_u24 v{vUO}, {16*1152}, v{vRG}")
    a(f"v_lshl_add_u32 v{vUO}, v{vHF}, 3, v{vUO}")
    a(f"s_lshl_b32 s{sT0}, s{sG}, 4")
    a(f"v_add_u32 v{vUO}, s{sT0}, v{vUO}")
    a(f"v_subrev_u32 v{vUH}, {3*1152}, v{vUO}")
    a(f"v_mov_b32 v{vT2}, {OOB}")
    a(f"v_cmp_eq_u32 vcc, 0, v{vRG}")
    a(f"v_cndmask_b32 v{vUH}, v{vUH}, v{vT2}, vcc")
    a(f"v_lshl_add_u32 v{vT}, v{vHF}, 3, s{sT0}")
    a("s_waitcnt lgkmcnt(0)")
    srd(a, 24, 4, 2048 * 1152)
    UR = 16
    DS = 54
    for i in range(3):
        a(f"buffer_load_dwordx2 {vr(UR+2*i,2)}, v{vUH}, s[24:27], 0 offen offset:{i*1152}"); vm.issue("u")
    for i in range(16):
        if i % 4 == 0: a(f"s_mov_b32 s{sT0}, {i*1152}")
        a(f"buffer_load_dwordx2 {vr(UR+6+2*i,2)}, v{vUO}, s[24:27], s{sT0} offen offset:{(i%4)*1152}"); vm.issue("u")
    a(f"global_load_dwordx2 {vr(DS,2)}, v{vT}, s[16:17]"); vm.issue("par")
    kg = KGen(a, 56, sJ, sT0, sT1, vL, vI, vQ)
    kg.load_params(vm, sCH, "par")
    srd(a, 28, 18, 2048 * 4608)
    kg.addresses()
    a(f"s_mov_b32 s{sSEL0}, 0x05040100")
    a(f"s_mov_b32 s{sSEL1}, 0x07060302")
    a(f"v_mul_u32_u24 v{vYR}, {ubase(2)}, v{vHF}")
    a(f"v_lshl_add_u32 v{vYR}, v{vRG}, 5, v{vYR}")
    a(f"v_add_u32 v{vUW}, 32, v{vYR}")
    a(f"v_mul_u32_u24 v{vOO}, {16*4608}, v{vRG}")
    a(f"v_lshl_add_u32 v{vOO}, v{vHF}, 4, v{vOO}")
    TMP = kg.end
    assert TMP + 32 <= 256, TMP
    def zero_pads(base):
        for i in range(4): a(f"v_mov_b32 v{TMP+i}, 0")
        a(f"v_and_b32 v{vT}, 1, v{vL}")
        a(f"v_lshlrev_b32 v{vT}, 4, v{vT}")
        a(f"v_bfe_u32 v{vT2}, v{vL}, 1, 2")
        a(f"v_mul_u32_u24 v{vT2}, {U_ST}, v{vT2}")
        s_ubase(a, sT1, sJ, sT0)
        if base: a(f"s_add_u32 s{sT1}, s{sT1}, {base}")
        a(f"v_add3_u32 v{vT}, v{vT}, v{vT2}, s{sT1}")
        a(f"ds_write_b128 v{vT}, {vr(TMP,4)}")
    def ucopies(r):
        k = 0
        for ip in range(2):
            sel = sSEL1 if ip else sSEL0
            for s in range(4):
                for blk in range(2):
                    d = TMP + 4 + 4 * (k % 6); k += 1
                    for j in range(4):
                        rho = 8 * blk - s + 2 * j
                        r0 = UR + 2 * (rho + 3) + r; r1 = UR + 2 * (rho + 4) + r
                        a(f"v_perm_b32 v{d+j}, v{r1}, v{r0}, s{sel}")
                    a(f"ds_write_b128 v{vUW}, {vr(d,4)} offset:{ip*16640 + s*U_ST + 16*blk}")
    zero_pads(0)
    st()
    vm.wait("u")
    st()
    ucopies(0)
    a("s_waitcnt lgkmcnt(0)")
    st()
    a("s_barrier")
    vm.wait("par")
    kg.run(); kg.pack()
    st()
    a("s_barrier")
    a(f"v_add_u32 v{vUW}, {TB}, v{vUW}")
    zero_pads(TB)
    ucopies(1)
    st()
    a("s_barrier")
    kg.write()
    a("s_waitcnt lgkmcnt(0)")
    a("s_barrier")
    OUT = 64; DF = 56; YR = 128; YT = 160
    a(f"v_lshlrev_b32 v{DF}, 16, v{DS}")
    a(f"v_and_b32 v{DF+1}, 0xffff0000, v{DS}")
    a(f"v_lshlrev_b32 v{DF+2}, 16, v{DS+1}")
    a(f"v_and_b32 v{DF+3}, 0xffff0000, v{DS+1}")
    for row in range(16):
        u = UR + 2 * (row + 3); d = OUT + 4 * row
        a(f"v_lshlrev_b32 v{d}, 16, v{u}")
        a(f"v_and_b32 v{d+1}, 0xffff0000, v{u}")
        a(f"v_lshlrev_b32 v{d+2}, 16, v{u+1}")
        a(f"v_and_b32 v{d+3}, 0xffff0000, v{u+1}")
        a(f"v_pk_mul_f32 {vr(d,2)}, {vr(d,2)}, {vr(DF,2)}")
        a(f"v_pk_mul_f32 {vr(d+2,2)}, {vr(d+2,2)}, {vr(DF+2,2)}")
        for k in range(4): a(f"v_cvt_pk_bf16_f32 v{d+k}, 0, v{d+k}")
    def yread(r):
        for ip in range(2):
            for h in range(2):
                a(f"ds_read_b128 {vr(YR+8*ip+4*h,4)}, v{vYR} offset:{ip*16640 + Y_OFF[r] + 16*h}")
        a("s_waitcnt lgkmcnt(0)")
    def yrow(r, row):
        d = OUT + 4 * row + 2 * r; t = YT + 2 * (row % 4)
        for ip in range(2):
            s = YR + 8 * ip + row // 2
            if row % 2 == 0: a(f"v_lshlrev_b32 v{t+ip}, 16, v{s}")
            else: a(f"v_and_b32 v{t+ip}, 0xffff0000, v{s}")
        a(f"v_pk_add_f32 {vr(d,2)}, {vr(d,2)}, {vr(t,2)}")
        a(f"v_cvt_pk_bf16_f32 v{d}, 0, v{d}")
        a(f"v_cvt_pk_bf16_f32 v{d+1}, 0, v{d+1}")
    yread(0)
    for row in range(16): yrow(0, row)
    a(f"s_lshl_b32 s{sT0}, s{sG}, 5")
    a(f"s_add_u32 s{sT0}, s{sT0}, 2304")
    st()
    a("s_barrier")
    a(f"s_cmp_ge_u32 s{sJ}, 2")
    a(f"s_cbranch_scc1 bh_go")
    a("s_barrier")
    a.label("bh_go")
    st()
    yread(1)
    for row in range(16):
        yrow(1, row)
        a(f"buffer_store_dwordx4 {vr(OUT+4*row,4)}, v{vOO}, s[28:31], s{sT0} offen")
        if row < 15: a(f"s_add_u32 s{sT0}, s{sT0}, 4608")
    a(f"s_cmp_lt_u32 s{sJ}, 2")
    a(f"s_cbranch_scc1 bh_done")
    a("s_barrier")
    a.label("bh_done")
    st.dump()
    a("s_endpgm")

def gen_fused(path, prefetch=True):
    a = Asm()
    a(f"s_cmp_ge_u32 s2, {NA+NB}")
    a("s_cbranch_scc1 k_end")
    a("v_lshrrev_b32 v1, 6, v0")
    if prefetch:
        a("s_getpc_b64 s[4:5]")
        a("s_and_b32 s4, s4, 0xffffff00")
        a("s_lshr_b32 s6, s2, 3")
        a("s_and_b32 s6, s6, 1")
        a("s_lshl_b32 s6, s6, 15")
        a("v_lshl_add_u32 v2, v0, 6, s6")
        a("v_min_u32 v2, CODE_BYTES-4, v2")
        a("v_and_b32 v2, -4, v2")
        a("global_load_dword v255, v2, s[4:5]")
    a(f"v_readfirstlane_b32 s{sW}, v1")
    a(f"s_cmp_ge_u32 s2, {NA}")
    a("s_cbranch_scc1 role_b")
    a(f"s_cmp_lt_u32 s{sW}, 4")
    a("s_cbranch_scc1 role_ac")
    parts = []
    for lab, fn in (("role_ah", gen_ah), ("role_ac", gen_ac), ("role_b", None), ("role_bh", gen_bh), ("role_bc", gen_bc)):
        a.label(lab); a.hist = []
        if fn is None:
            a(f"s_cmp_lt_u32 s{sW}, 4")
            a("s_cbranch_scc1 role_bc")
            continue
        n0 = a.count
        fn(a)
        print(lab, a.count - n0)
    a.label("k_end")
    a("s_endpgm")
    a.label("code_end")
    hdr = open("concat_heads__ssm_conv_s5__ssm_conv_s4d__prompt.s.ref").read().split("; @launch")[0]
    hdr += f"; @launch grid=({NA+NB},1,1) block=(512,1,1) lds={LDS}\n"
    body = f'.amdgcn_target "amdgcn-amd-amdhsa--gfx950"\n.text\n.globl {KN}\n.p2align 8\n.type {KN},@function\n.set CODE_BYTES, code_end-{KN}\n{KN}:\n' + a.text()
    open(path, "w").write(hdr + body + '.section .rodata,"a"\n' + kd(KN, dict(vgpr=256, accum=256, sgpr=100)))

if __name__ == "__main__":
    if "st" in sys.argv[1:]: gen.STAMPS = True
    gen_fused("f.s" if not gen.STAMPS else "f_st.s")
```

```python
import re

TRANS = ("v_exp_f32", "v_log_f32", "v_rcp_f32", "v_rsq_f32", "v_sqrt_f32", "v_sin_f32", "v_cos_f32")
REG_RE = re.compile(r"(?<![\w.])([vas])(?:(\d+)|\[(\d+):(\d+)\])(?![\w])")

def regs_of(tok):
    out = set()
    for m in REG_RE.finditer(tok):
        k = m.group(1)
        if m.group(2) is not None:
            out.add((k, int(m.group(2))))
        else:
            for i in range(int(m.group(3)), int(m.group(4)) + 1):
                out.add((k, i))
    for name in ("vcc", "exec", "m0"):
        if re.search(r"(?<![\w])%s(?![\w])" % name, tok) or re.search(r"(?<![\w])%s_(lo|hi)(?![\w])" % name, tok):
            out.add((name, 0))
    return out

def split_ops(s):
    ops = []; cur = ""; depth = 0
    for ch in s:
        if ch == "[": depth += 1
        if ch == "]": depth -= 1
        if ch == "," and depth == 0:
            ops.append(cur.strip()); cur = ""
        else:
            cur += ch
    if cur.strip(): ops.append(cur.strip())
    return ops

class Ins:
    def __init__(self, text):
        self.text = text
        t = text.split(";")[0].strip()
        parts = t.split(None, 1)
        self.op = parts[0]
        rest = parts[1] if len(parts) > 1 else ""
        ops = split_ops(rest)
        if ops:
            last = ops[-1].split()
            self.mods = " ".join(last[1:])
            ops[-1] = last[0] if last else ""
        else:
            self.mods = ""
        self.ops = ops
        op = self.op
        self.mfma = op.startswith("v_mfma")
        self.valu = op.startswith("v_") and not self.mfma
        self.trans = op in TRANS
        self.vmem = op.startswith("buffer_") or op.startswith("global_")
        self.ds = op.startswith("ds_")
        self.salu = op.startswith("s_")
        self.dpp = "dpp" in op or "row_" in self.mods or "wave_" in self.mods or "quad_perm" in self.mods
        self.permlane = op.startswith("v_permlane")
        self.readlane = op.startswith("v_readlane") or op.startswith("v_readfirstlane")
        self.ws = 1
        if op == "s_nop": self.ws = int(ops[0], 0) + 1
        d = set(); u = set()
        R = [regs_of(o) for o in ops]
        self.lds_dma = self.vmem and re.search(r"(?<![\w])lds(?![\w])", self.mods) is not None
        if self.mfma:
            d = R[0]; u = R[1] | R[2] | R[3]
            self.A = R[1]; self.B = R[2]; self.C = R[3]
            self.passes = 4 if "16x16x32" in op else 8
        elif self.valu:
            if self.permlane:
                d = R[0] | R[1]; u = R[0] | R[1]
            elif op.startswith("v_cmp"):
                d = R[0]; u = set().union(*R[1:])
            elif op.startswith("v_add_co") or op.startswith("v_addc_co") or op.startswith("v_sub_co"):
                d = R[0] | R[1]; u = set().union(*R[2:])
            else:
                d = R[0]; u = set().union(*R[1:]) if len(R) > 1 else set()
                if op.startswith("v_fmac") or op.startswith("v_pk_fmac") or self.dpp or op.startswith("v_writelane"):
                    u |= R[0]
        elif self.vmem and not ops:
            pass
        elif op.startswith("buffer_wbl2") or op.startswith("buffer_inv"):
            pass
        elif self.vmem:
            if "store" in op or "atomic" in op:
                u = set().union(*R)
                self.data = R[0] if op.startswith("buffer_") else R[1]
                if "atomic" in op and "sc0" in self.mods: d = self.data
            elif self.lds_dma:
                u = set().union(*R) | {("m0", 0)}
            else:
                d = R[0]; u = set().union(*R[1:])
        elif self.ds:
            if op.startswith("ds_write") or op.startswith("ds_add"):
                u = set().union(*R)
            else:
                d = R[0]; u = set().union(*R[1:])
        elif self.salu:
            if op.startswith("s_cmp") or op.startswith("s_cbranch") or op in ("s_nop", "s_waitcnt", "s_barrier", "s_endpgm", "s_branch", "s_sleep", "s_setprio"):
                u = set().union(*R) if R else set()
            else:
                d = R[0] if R else set(); u = set().union(*R[1:]) if len(R) > 1 else set()
                if "saveexec" in op: d = d | {("exec", 0)}
        self.d = d; self.u = u
        self.wide_store = self.vmem and "store" in op and ("x4" in op or "x3" in op)

def need(prod, cons):
    n = 0
    pv = {r for r in prod.d if r[0] in "va" and len(r[0]) == 1}
    ps = {r for r in prod.d if r[0] in ("s", "vcc")}
    if prod.valu:
        if cons.mfma and pv & cons.u: n = max(n, 2)
        if prod.trans and cons.valu and not cons.trans and pv & cons.u: n = max(n, 1)
        if prod.trans and (cons.vmem or cons.ds) and pv & cons.u: n = max(n, 1)
        if (cons.permlane or (cons.valu and cons.dpp)) and pv & cons.u: n = max(n, 2)
        if cons.readlane and pv & cons.u: n = max(n, 1)
        if ps:
            if cons.valu and ps & cons.u: n = max(n, 4 if cons.readlane or cons.op.startswith("v_writelane") else 2)
            if cons.vmem and ps & cons.u: n = max(n, 5)
            if cons.salu and ps & cons.u: n = max(n, 1)
    if prod.mfma:
        big = 8 if prod.passes == 4 else 12
        ovl = 6 if prod.passes == 4 else 10
        if cons.mfma:
            if prod.d & (cons.A | cons.B): n = max(n, big)
            if prod.d & cons.C:
                if not (prod.d == cons.C and prod.passes == cons.passes): n = max(n, ovl)
            elif prod.d & cons.d: n = max(n, ovl)
        else:
            if prod.d & (cons.u | cons.d): n = max(n, big)
            if cons.valu and prod.C & cons.d: n = max(n, 3 if prod.passes == 4 else 7)
    if prod.salu and ("m0", 0) in prod.d and cons.lds_dma: n = max(n, 1)
    if prod.wide_store and prod.data & cons.d and not cons.salu: n = max(n, 2)
    return n

class Asm:
    def __init__(self):
        self.lines = []
        self.hist = []
        self.nops = 0
        self.count = 0
    def raw(self, s):
        self.lines.append(s)
    def label(self, name):
        self.lines.append(name + ":")
    def fence(self, n=12):
        dist = 0; worst = 0
        for p in reversed(self.hist[-16:]):
            w = 0
            if p.mfma: w = 8 if p.passes == 4 else 12
            elif p.valu: w = 5 if any(r[0] in ("s", "vcc") for r in p.d) else 2
            elif p.wide_store: w = 2
            elif p.salu and ("m0", 0) in p.d: w = 1
            worst = max(worst, w - dist)
            dist += p.ws
        if worst > 0: self("s_nop %d" % (worst - 1))
    def __call__(self, text):
        for t in text.strip().split("\n"):
            t = t.strip()
            if not t or t.startswith(";"):
                if t: self.lines.append("    " + t)
                continue
            ins = Ins(t)
            dist = 0; pad = 0
            for p in reversed(self.hist[-16:]):
                n = need(p, ins)
                if n - dist > pad: pad = n - dist
                dist += p.ws
                if dist >= 12: break
            if pad > 0:
                nop = Ins("s_nop %d" % (pad - 1))
                self.hist.append(nop); self.lines.append("    " + nop.text); self.nops += pad
            self.hist.append(ins); self.lines.append("    " + t); self.count += 1
    def text(self):
        return "\n".join(self.lines) + "\n"

def vr(b, n=1, k="v"):
    return f"{k}{b}" if n == 1 else f"{k}[{b}:{b+n-1}]"
def ar(b, n=1): return vr(b, n, "a")
def sr(b, n=1): return vr(b, n, "s")
```

```python
import sys
sys.path.insert(0, "work")
import gen
from gen import *
from genb import xrows

NA, NB = 144, 72
LDS = 163840
KN = "concat_heads__ssm_conv_s5__ssm_conv_s4d__prompt_kernel"
OOB = "0x7fffffff"

sWG, sW = 2, 3

class St(Stamp):
    def __call__(self):
        if not gen.STAMPS: return
        a = self.a
        a(f"s_memtime s[96:97]")
        a(f"s_memrealtime s[{64+2*self.n}:{65+2*self.n}]")
        a("s_waitcnt lgkmcnt(0)")
        a(f"s_mov_b32 s{65+2*self.n}, s96")
        self.n += 1
        assert self.n <= 16
    def dump(self):
        if not gen.STAMPS: return
        a = self.a
        a("s_waitcnt vmcnt(0)")
        self()
        a("s_load_dwordx2 s[96:97], s[0:1], 144")
        a(f"s_lshl_b32 s98, s2, 2")
        a(f"s_and_b32 s99, s{sW}, 3")
        a(f"s_add_u32 s98, s98, s99")
        a(f"s_lshl_b32 s98, s98, 7")
        a(f"s_add_u32 s98, s98, {WS_STAMP + self.kid*1024*128}")
        a("v_mov_b32 v1, s98")
        a("s_waitcnt lgkmcnt(0)")
        for i in range(self.n):
            a(f"v_mov_b32 v2, s{64+2*i}")
            a(f"v_mov_b32 v3, s{65+2*i}")
            a(f"global_store_dwordx2 v1, v[2:3], s[96:97] offset:{8*i}")

KA = 64
class Args:
    def __init__(self, a): self.a = a; self.q = []
    def want(self, dst, off, n):
        if EARLYKA: self.q.append((dst, off, n))
        else: self.a(f"s_load_dwordx{n} s[{dst}:{dst+n-1}], s[0:1], {off}")
    def get(self):
        self.a("s_waitcnt lgkmcnt(0)")
        for dst, off, n in self.q:
            for k in range(0, n, 2):
                self.a(f"s_mov_b64 s[{dst+k}:{dst+k+1}], s[{KA+off//4+k}:{KA+off//4+k+1}]")

def wait_cleared(a, nm, vT, vZ, srd0):
    a.label(f"{nm}_clr")
    a(f"v_cmp_eq_u32 vcc, 0, v{vT}")
    a(f"s_cmp_eq_u64 vcc, 0")
    a(f"s_cbranch_scc1 {nm}_clr_ok")
    a(f"s_sleep 2")
    a(f"buffer_load_dword v{vT}, v{vZ}, s[{srd0}:{srd0+3}], 0 offen offset:240 sc1")
    a("s_waitcnt vmcnt(0)")
    a(f"s_branch {nm}_clr")
    a.label(f"{nm}_clr_ok")

def decode_cs(a, sC, sS, sT0, sT1):
    a(f"s_and_b32 s{sC}, s2, 7")
    a(f"s_lshl_b32 s{sC}, s{sC}, 1")
    a(f"s_lshr_b32 s{sS}, s2, 3")
    a(f"s_cmp_ge_u32 s{sS}, 9")
    a(f"s_cselect_b32 s{sT0}, 1, 0")
    a(f"s_add_u32 s{sC}, s{sC}, s{sT0}")
    a(f"s_mul_i32 s{sT1}, s{sT0}, 9")
    a(f"s_sub_u32 s{sS}, s{sS}, s{sT1}")

E_ROW = 256 + 0
E_HALF = 128 * E_ROW
PRE_FILL = 40
TOUCH = False
MISSFIRST = 2
CP1 = 4
FAST = 1
FINEP = 1
BBT = 0
PB1 = 8
SKW = 0
ACPRIO = 0
AHPRIO = 0
BPLATE = 1
EARLYKA = 1
DIT = (0, 4, 8, 10, 12, 14, 15, 16, 20, 24, 26, 28, 30)
WBL2 = 0
DELAY = 'none'
DSLP = 32
SPAR = 1
SP0 = 80
PPOLL = 0
PP1 = 5
PROBE = 9
BPRIO = 1
HTOUCH = 0
NTU = ''
HA = 3
HLD = "sc1"
HA2 = 0
CEARLY = 1
NT = ''
PBAR = 1
DETAIL = 0
POLL_SLEEP = 2
XA = 2
WS_F = WS_S + S_BYTES
F_BYTES = 16 * 9 * 128
WS_KF = WS_F + F_BYTES
KF_BYTES = 72 * 128
CLR_BYTES = S_BYTES + F_BYTES + KF_BYTES
WS_K = 9 << 20
NP = 40
OUT_SC = ""

def gen_ac(a):
    vm = Ctr(a, "vmcnt", 63); lg = Ctr(a, "lgkmcnt", 15)
    st = St(a, 0); st0 = st
    if ACPRIO: a(f"s_setprio {ACPRIO}")
    ka = Args(a); ka.want(4, 8, 4)
    ka.want(8, 56, 2)
    ka.want(20, 136, 4)
    ka.want(10, 128, 2)
    sC, sS, sT0, sT1, sPG, sKH, sDH = 48, 49, 50, 51, 52, 53, 54
    decode_cs(a, sC, sS, sT0, sT1)
    vL, vPC, vQ, vA0, vA1, vB0, vB1, vT, vT2, vSO, vP2, vHO, vFL, vLO, vAb = range(1, 16)
    a(f"v_and_b32 v{vL}, 63, v0")
    a(f"v_and_b32 v{vPC}, 15, v0")
    a(f"v_lshrrev_b32 v{vQ}, 4, v{vL}")
    a(f"s_lshl_b32 s{sPG}, s{sS}, 2")
    a(f"s_add_u32 s{sPG}, s{sPG}, s{sW}")
    a(f"s_lshl_b32 s{sT1}, s{sPG}, 4")
    a(f"v_add_u32 v{vT}, s{sT1}, v{vPC}")
    a(f"v_lshlrev_b32 v{vP2}, 1, v{vT}")
    a(f"s_mul_i32 s{sT1}, s{sC}, 576")
    a(f"v_add_u32 v{vT}, s{sT1}, v{vT}")
    a(f"v_lshlrev_b32 v{vSO}, 3, v{vT}")
    a(f"v_mul_u32_u24 v{vT}, {4*4608}, v{vQ}")
    a(f"v_sub_u32 v{vLO}, v{vSO}, v{vT}")
    for i in range(4):
        a(f"v_subrev_u32 v{244+i}, {(i+1)*4608}, v{vLO}")
    a(f"v_cmp_eq_u32 vcc, 3, v{vQ}")
    a(f"v_mov_b32 v{vT}, {OOB}")
    a(f"v_cndmask_b32 v{vSO}, v{vT}, v{vSO}, vcc")
    ka.get(); st0()
    vLre, vLim, vLdt = 40, 41, 42
    if SPAR:
        a(f"s_lshl_b32 s{sT0}, s{sPG}, 5")
        a(f"s_load_dwordx8 s[64:71], s[4:5], s{sT0}") if not gen.STAMPS else None
        a(f"s_load_dwordx8 s[72:79], s[6:7], s{sT0}") if not gen.STAMPS else None
        a(f"s_load_dwordx8 s[80:87], s[8:9], s{sT0}") if not gen.STAMPS else None
        if gen.STAMPS:
            a(f"s_load_dwordx8 s[{SP0}:{SP0+7}], s[4:5], s{sT0}")
            a(f"s_load_dwordx8 s[{SP0+8}:{SP0+15}], s[6:7], s{sT0}")
            a(f"s_load_dwordx8 s[12:19], s[8:9], s{sT0}")
    else:
        a(f"global_load_ushort v{vLre}, v{vP2}, s[4:5]"); vm.issue("par")
        a(f"global_load_ushort v{vLim}, v{vP2}, s[6:7]"); vm.issue("par")
        a(f"global_load_ushort v{vLdt}, v{vP2}, s[8:9]"); vm.issue("par")
    srd(a, 40, 22, S_BYTES, WS_S)
    srd(a, 36, 10, 2048 * 4608)
    srd(a, 44, 20, 256)
    if TOUCH:
        a("s_load_dwordx4 s[8:11], s[0:1], 40")
        a("s_load_dwordx2 s[12:13], s[0:1], 128")
        a(f"v_lshl_add_u32 v{vT}, s{sW}, 6, v{vL}")
        a(f"v_lshlrev_b32 v{vT2}, 15, v{vT}")
        a(f"buffer_load_dword v250, v{vT2}, s[36:39], 0 offen"); vm.issue("tch")
        a("s_waitcnt lgkmcnt(0)")
        srd(a, 24, 12, 2048 * 4608)
        a(f"v_mul_u32_u24 v{vT2}, 36864, v{vT}")
        a(f"buffer_load_dword v251, v{vT2}, s[24:27], 0 offen"); vm.issue("tch")
        srd(a, 24, 8, 576 * 1152)
        srd(a, 28, 10, 576 * 1152)
        a(f"v_lshlrev_b32 v{vT2}, 15, v{vT}")
        a(f"buffer_load_dword v252, v{vT2}, s[24:27], 0 offen"); vm.issue("tch")
        a(f"buffer_load_dword v253, v{vT2}, s[28:31], 0 offen"); vm.issue("tch")
    a(f"v_lshrrev_b32 v{vT}, 1, v{vPC}")
    a(f"v_xor_b32 v{vT}, v{vT}, v{vQ}")
    a(f"v_lshlrev_b32 v{vT}, 4, v{vT}")
    a(f"v_lshl_add_u32 v{vAb}, v{vPC}, 7, v{vT}")
    a(f"v_and_b32 v{vT}, 1, v{vQ}")
    a(f"v_lshlrev_b32 v{vT}, 2, v{vT}")
    a(f"v_xor_b32 v{vT}, v{vT}, v{vL}")
    a(f"v_lshlrev_b32 v{vHO}, 4, v{vT}")
    sID, sFAST = 56, 57
    vIDW, vIDR, vIDV = 240, 241, 242
    a(f"s_getreg_b32 s{sID}, hwreg(HW_REG_XCC_ID)")
    a(f"s_and_b32 s{sID}, s{sID}, 15")
    a(f"v_and_b32 v{vFL}, 3, v0")
    a(f"v_lshlrev_b32 v{vFL}, 2, v{vFL}")
    srd(a, 24, 22, F_BYTES, WS_F)
    a(f"s_mul_i32 s{sT0}, s{sC}, {9*128}")
    a(f"v_min_u32 v{vIDR}, 8, v{vL}")
    a(f"v_lshl_add_u32 v{vIDR}, v{vIDR}, 7, s{sT0}")
    a(f"s_lshl_b32 s{sT1}, s{sS}, 7")
    a(f"s_add_u32 s{sT0}, s{sT0}, s{sT1}")
    a(f"v_mov_b32 v{vIDW}, s{sT0}")
    a(f"v_mov_b32 v{vIDV}, {OOB}")
    a(f"v_cmp_eq_u32 vcc, 0, v0")
    a(f"v_cndmask_b32 v{vIDW}, v{vIDV}, v{vIDW}, vcc")
    a(f"v_and_b32 v243, 255, v{vHO}")
    a(f"v_mul_u32_u24 v{vT}, 4608, v{vQ}")
    a(f"v_add_u32 v243, v243, v{vT}")
    a(f"s_lshl_b32 s{sT0}, s{sC}, 7")
    a(f"s_lshl_b32 s{sT1}, s{sW}, 4")
    a(f"s_add_u32 s{sT0}, s{sT0}, s{sT1}")
    a(f"s_mul_i32 s{sT0}, s{sT0}, 4608")
    a(f"s_lshl_b32 s{sT1}, s{sS}, 8")
    a(f"s_add_u32 s28, s{sT0}, s{sT1}")
    for k in range(1, 8):
        a(f"s_add_u32 s{28+k}, s28, {((k >> 2) * 64 + (k & 3) * 4) * 4608}")
    sWB = 55
    a(f"s_lshl_b32 s{sWB}, s{sW}, 12")
    L1, L16, L32, L64, MR, MI, M3, WL, CF = 16, 18, 20, 22, 24, 26, 28, 30, 38
    ER, TH, T0, T1, T2, T3, KQ = 46, 47, 48, 49, 50, 51, 52
    WT = 192
    fill = []
    fill += [f"v_lshlrev_b32 v{vLre}, 16, v{vLre}", f"v_lshlrev_b32 v{vLim}, 16, v{vLim}", f"v_lshlrev_b32 v{vLdt}, 16, v{vLdt}",
             f"v_mul_f32 v{vLdt}, {LOG2E}, v{vLdt}", f"v_exp_f32 v{vLdt}, v{vLdt}", f"v_cvt_pk_bf16_f32 v{vLdt}, 0, v{vLdt}",
             f"v_mul_f32 v{ER}, v{vLdt}, v{vLre}", f"v_mul_f32 v{TH}, v{vLdt}, v{vLim}",
             f"v_mul_f32 v{ER}, {LOG2E}, v{ER}", f"v_mul_f32 v{TH}, {INV2PI}, v{TH}"]
    fill += cexp(L1, L1 + 1, ER, TH, None, T0, T1)
    fill += cexp(L16, L16 + 1, ER, TH, f32hex(16.0), T0, T1)
    fill += cexp(L32, L32 + 1, ER, TH, f32hex(32.0), T0, T1)
    fill += cexp(L64, L64 + 1, ER, TH, f32hex(64.0), T0, T1)
    fill += [f"v_cvt_f32_u32 v{KQ}, v{vQ}", f"v_mul_f32 v{T2}, {f32hex(32.0)}, v{KQ}"]
    fill += cexp(MR, MI, ER, TH, f"v{T2}", T0, T1)
    fill += [f"v_add_f32 v{T2}, {f32hex(16.0)}, v{T2}"]
    fill += cexp(MR + 1, MI + 1, ER, TH, f"v{T2}", T0, T1)
    fill += [f"v_cmp_eq_u32 vcc, 3, v{vQ}", f"v_cndmask_b32 v{M3}, 1.0, v{L32}, vcc", f"v_cndmask_b32 v{M3+1}, 0, v{L32+1}, vcc"]
    fill += [f"v_mul_f32 v{T2}, {f32hex(512.0)}, v{KQ}"]
    for i in range(4):
        fill += cexp(WL + 2 * i, WL + 2 * i + 1, ER, TH, f"v{T2}", T0, T1)
        if i < 3: fill += [f"v_add_f32 v{T2}, {f32hex(128.0)}, v{T2}"]
    fill += [f"v_mul_f32 v{T0}, v{vLre}, v{vLre}", f"v_fma_f32 v{T0}, v{vLim}, v{vLim}, v{T0}", f"v_rcp_f32 v{T0}, v{T0}",
             f"v_add_f32 v{T1}, -1.0, v{L1}", f"v_add_f32 v{T0}, v{T0}, v{T0}",
             f"v_mul_f32 v{T2}, v{T1}, v{vLre}", f"v_mul_f32 v{T3}, v{L1+1}, v{vLre}",
             f"v_fma_f32 v{T2}, v{L1+1}, v{vLim}, v{T2}", f"v_fma_f32 v{T3}, -v{T1}, v{vLim}, v{T3}",
             f"v_mul_f32 v{CF}, v{T2}, v{T0}", f"v_mul_f32 v{CF+1}, v{T3}, v{T0}"]
    wchain = cmul_pk(WT, CF, L1)
    for i in range(1, 16): wchain += cmul_pk(WT + 2 * i, WT + 2 * i - 2, L1)
    RA, IA, F, FB = 64, 96, [128, 160], [224, 232]
    def set_bases(step):
        slot = (step % 5) * 32768
        o = [f"v_add_u32 v{vA0}, {slot}, v{vAb}" if slot else f"v_mov_b32 v{vA0}, v{vAb}",
             f"v_xor_b32 v{vA1}, 64, v{vA0}", f"v_add_u32 v{vB0}, s{sWB}, v{vA0}", f"v_xor_b32 v{vB1}, 64, v{vB0}"]
        return o
    def g1_reads(g):
        step, ks = g // 2, g % 2
        o = []
        for ai in range(2):
            o.append((f"ds_read_b128 {vr(FB[ks]+4*ai,4)}, v{vB1 if ks else vB0} offset:{16384 + ai*2048}", f"b{g}_{ai}"))
        for m in range(8):
            o.append((f"ds_read_b128 {vr(F[ks]+4*m,4)}, v{vA1 if ks else vA0} offset:{m*2048}", f"a{g}_{m}"))
        return o
    def g1_mfmas(g):
        ks = g % 2
        o = []
        for m in range(8):
            for ai in range(2):
                D = (IA if ai else RA) + 4 * m
                Cs = "0" if g == 0 else vr(D, 4)
                o.append((f"v_mfma_f32_16x16x32_bf16 {vr(D,4)}, {vr(F[ks]+4*m,4)}, {vr(FB[ks]+4*ai,4)}, {Cs}", f"a{g}_{m}"))
        return o
    for t in set_bases(0): a(t)
    if SPAR:
        base = [64, 72, 80] if not gen.STAMPS else [SP0, SP0 + 8, 12]
        a(f"v_lshrrev_b32 v{T0}, 1, v{vPC}")
        a(f"v_and_b32 v{T1}, 1, v{vPC}")
        a(f"v_lshlrev_b32 v{T1}, 4, v{T1}")
        a("s_waitcnt lgkmcnt(0)")
        for j, d in enumerate((vLre, vLim, vLdt)): a(f"v_mov_b32 v{d}, s{base[j]}")
        for k in range(1, 8):
            a(f"v_cmp_eq_u32 vcc, {k}, v{T0}")
            for j in range(3): a(f"v_mov_b32 v{T2+j}, s{base[j]+k}")
            for j, d in enumerate((vLre, vLim, vLdt)): a(f"v_cndmask_b32 v{d}, v{d}, v{T2+j}, vcc")
        for d in (vLre, vLim, vLdt): a(f"v_lshrrev_b32 v{d}, v{T1}, v{d}")
        while fill: a(fill.pop(0))
        a.raw(".p2align 3")
        while wchain: a(wchain.pop(0))
    st()
    a("s_barrier")
    st()
    for t, tag in g1_reads(0): a(t); lg.issue(tag)
    for g in range(18):
        nxt = g1_reads(g + 1) if g + 1 < 18 else []
        if g % 2 == 1:
            if g < 17:
                for t in set_bases(g // 2 + 1): a(t)
            else:
                lg.wait_all()
            a("s_barrier")
            if g == PROBE:
                a(f"buffer_load_dword v{vT}, v{vFL}, s[44:47], 0 offen offset:240 sc1"); vm.issue("flg")
            if g == PROBE + 4:
                vm.wait("flg")
                a(f"v_cmp_eq_u32 vcc, 0, v{vT}")
                a(f"v_mov_b32 v{vT2}, s{sID}")
                a(f"s_cmp_eq_u64 vcc, 0")
                a(f"s_cselect_b64 s[60:61], -1, 0")
                a(f"v_cndmask_b32 v{vIDW}, v{vIDV}, v{vIDW}, s[60:61]")
                a(f"buffer_store_dword v{vT2}, v{vIDW}, s[24:27], 0 offen offset:16 sc1"); vm.issue("id")
        for i, (t, tag) in enumerate(g1_mfmas(g)):
            lg.wait(tag)
            a(t)
            if nxt:
                rt, rtag = nxt.pop(0); a(rt); lg.issue(rtag)
            elif fill and g >= 2:
                vm.wait("par")
                a(fill.pop(0))
                if fill: a(fill.pop(0))
    while fill: a(fill.pop(0))
    st()
    a.raw(".p2align 3")
    def pr(i): return RA + 4 * (i // 2) + 2 * (i % 2)
    def pi(i): return IA + 4 * (i // 2) + 2 * (i % 2)
    for i in range(1, 16):
        a(pk_fma_b(pr(i), pr(i - 1), L1, False, pr(i)))
        a(pk_fma_b(pi(i), pi(i - 1), L1, False, pi(i)))
        a(pk_fma_b(pr(i), pi(i - 1), L1, True, pr(i), neg=True))
        a(pk_fma_b(pi(i), pr(i - 1), L1, True, pi(i)))
    a0r, a0i, a1r, a1i = pr(15), pi(15), pr(15) + 1, pi(15) + 1
    AR, AI, ZR, ZI, TR, TI, YR, YI, Z2R, Z2I, SR, SI = 40, 41, 42, 43, 44, 45, 46, 47, 48, 49, 50, 51
    EPR, EPI = 52, 54
    a(f"v_mov_b32 v{ZR}, 0"); a(f"v_mov_b32 v{ZI}, 0")
    a(f"v_mov_b32 v{Z2R}, 0"); a(f"v_mov_b32 v{Z2I}, 0")
    for s in cfma(AR, AI, L16, L16 + 1, a0r, a0i, a1r, a1i): a(s)
    a(f"v_mov_b32 v{TR}, v{AR}"); a(f"v_mov_b32 v{TI}, v{AI}")
    a(f"v_permlane16_swap_b32 v{ZR}, v{TR}"); a(f"v_permlane16_swap_b32 v{ZI}, v{TI}")
    for s in cfma(YR, YI, L32, L32 + 1, ZR, ZI, AR, AI): a(s)
    a(f"v_mov_b32 v{TR}, v{YR}"); a(f"v_mov_b32 v{TI}, v{YI}")
    a(f"v_permlane16_swap_b32 v{TR}, v{YR}"); a(f"v_permlane16_swap_b32 v{TI}, v{YI}")
    a(f"v_permlane32_swap_b32 v{Z2R}, v{YR}"); a(f"v_permlane32_swap_b32 v{Z2I}, v{YI}")
    for s in cfma(SR, SI, L64, L64 + 1, Z2R, Z2I, YR, YI): a(s)
    a(f"v_and_b32 v{SR}, -2, v{SR}"); a(f"v_and_b32 v{SI}, -2, v{SI}")
    wait_cleared(a, "ac", vT, vFL, 44)
    a(f"buffer_store_dwordx2 v[{SR}:{SI}], v{vSO}, s[40:43], 0 offen sc1"); vm.issue("pub")
    st()
    SL = F[1]; LOi = 244; PA, PB = F[1] + 8, F[1] + 16
    def poll(P):
        for i in range(4):
            a(f"buffer_load_dwordx2 {vr(P+2*i,2)}, v{LOi+i}, s[40:43], 0 offen sc1")
    a.raw(".p2align 3")
    for s in cfma(EPR, EPI, M3, M3 + 1, Z2R, Z2I, ZR, ZI): a(s)
    for s in cfma(EPR + 1, EPI + 1, L16, L16 + 1, EPR, EPI, a0r, a0i): a(s)
    RN = F[0]
    def pn(i): return RN + 4 * (i // 2) + 2 * (i % 2)
    for i in range(16):
        a(pk_mul_b(pn(i), pr(i), CF, False))
        a(pk_fma_b(pn(i), pi(i), CF, True, pn(i), neg=True))
        a(pk_mul_b(pi(i), pi(i), CF, False, neg=True))
        a(pk_fma_b(pi(i), pr(i), CF, True, pi(i), neg=True))
        if PPOLL and i == PP1: poll(PA)
    for t in wchain: a(t)
    a(f"buffer_load_dword v{vIDV}, v{vIDR}, s[24:27], 0 offen offset:16 sc1")
    vR0, vR1, vRb, vEW, vEW2, vFW, vOW = vSO, vP2, vLO, vFL, vB1, 58, 59
    a(f"s_lshr_b32 s{sKH}, s{sW}, 1")
    a(f"s_and_b32 s{sDH}, s{sW}, 1")
    vN = vPC
    a(f"v_and_b32 v{vT}, 1, v{vQ}")
    a(f"v_lshrrev_b32 v{vT2}, 2, v{vN}")
    a(f"v_lshl_add_u32 v{vT}, v{vT}, 3, v{vT2}")
    a(f"v_lshlrev_b32 v{vRb}, 4, v{vT}")
    a(f"v_bfe_u32 v{vT}, v{vN}, 1, 1")
    a(f"v_mul_u32_u24 v{vT}, 320, v{vT}")
    a(f"v_add_u32 v{vRb}, v{vRb}, v{vT}")
    a(f"v_and_b32 v{vT}, 1, v{vN}")
    a(f"v_lshl_add_u32 v{vRb}, v{vT}, 3, v{vRb}")
    a(f"v_lshrrev_b32 v{vT}, 1, v{vQ}")
    a(f"v_lshl_add_u32 v{vRb}, v{vT}, 12, v{vRb}")
    a(f"s_lshl_b32 s{sT0}, s{sKH}, 14")
    a(f"v_add_u32 v{vRb}, s{sT0}, v{vRb}")
    a(f"s_lshl_b32 m0, s{sW}, 14")
    a(f"v_add_u32 v{vB0}, s{sWB}, v{vAb}")
    a(f"s_mul_i32 s{sT0}, s{sC}, 9")
    a(f"s_add_u32 s{sT0}, s{sT0}, s{sS}")
    a(f"s_lshl_b32 s{sT0}, s{sT0}, 7")
    a(f"s_lshl_b32 s{sT1}, s{sW}, 2")
    a(f"s_add_u32 s{sT0}, s{sT0}, s{sT1}")
    a(f"v_mov_b32 v{vFW}, s{sT0}")
    a(f"v_mov_b32 v{vT2}, {OOB}")
    a(f"v_cmp_eq_u32 vcc, 0, v{vL}")
    a(f"v_cndmask_b32 v{vFW}, v{vT2}, v{vFW}, vcc")
    a(f"v_mov_b32 v{vT2}, 1")
    a(f"v_add_u32 v{vOW}, s{sWB}, v{vHO}")
    def check(P):
        a(f"v_max_u32 v{TR}, v{P}, v{P+1}")
        a(f"v_max3_u32 v{TR}, v{P+2}, v{P+3}, v{TR}")
        a(f"v_max3_u32 v{TI}, v{P+4}, v{P+5}, v{P+6}")
        a(f"v_max3_u32 v{TR}, v{P+7}, v{TI}, v{TR}")
        a(f"v_cmp_eq_u32 vcc, -1, v{TR}")
        for i in range(8): a(f"v_mov_b32 v{SL+i}, v{P+i}")
        a(f"s_cmp_eq_u64 vcc, 0")
        a(f"s_cbranch_scc1 ac_poll_ok")
    if PPOLL:
        a.label("ac_poll")
        poll(PB)
        a("s_waitcnt vmcnt(4)")
        check(PA)
        poll(PA)
        a("s_waitcnt vmcnt(4)")
        check(PB)
        a(f"s_branch ac_poll")
    else:
        a.label("ac_poll")
        poll(PA)
        a("s_waitcnt vmcnt(0)")
        check(PA)
        a(f"s_sleep {POLL_SLEEP}")
        a(f"s_branch ac_poll")
    vm.q = []
    a.label("ac_poll_ok")
    st()
    a(f"v_cmp_eq_u32 vcc, s{sID}, v{vIDV}")
    a(f"s_and_b32 s{sFAST}, vcc_lo, 0x1ff")
    if not FAST: a(f"s_mov_b32 s{sFAST}, 0")
    HR, HI = 56, 57
    a(f"v_mul_f32 v{HR}, v{WL}, v{SL}")
    a(f"v_mul_f32 v{HI}, v{WL}, v{SL+1}")
    a(f"v_fma_f32 v{HR}, -v{WL+1}, v{SL+1}, v{HR}")
    a(f"v_fma_f32 v{HI}, v{WL+1}, v{SL}, v{HI}")
    for i in range(1, 4):
        for s in cfma(HR, HI, WL + 2 * i, WL + 2 * i + 1, SL + 2 * i, SL + 2 * i + 1, HR, HI): a(s)
    for sw in ("16", "32"):
        a(f"v_mov_b32 v{TR}, v{HR}"); a(f"v_mov_b32 v{TI}, v{HI}")
        a(f"v_permlane{sw}_swap_b32 v{TR}, v{HR}"); a(f"v_permlane{sw}_swap_b32 v{TI}, v{HI}")
        a(f"v_add_f32 v{HR}, v{HR}, v{TR}"); a(f"v_add_f32 v{HI}, v{HI}, v{TI}")
    a.raw(".p2align 3")
    a(pk_fma_b(EPR, MR, HR, False, EPR))
    a(pk_fma_b(EPI, MR, HR, True, EPI))
    a(pk_fma_b(EPR, MI, HR, True, EPR, neg=True))
    a(pk_fma_b(EPI, MI, HR, False, EPI))
    PK = RA
    def two_way(nm, fn):
        a(f"s_cmp_eq_u32 s{sFAST}, 0x1ff")
        a(f"s_cbranch_scc1 {nm}_f")
        fn("sc1")
        a(f"s_branch {nm}_j")
        a.label(f"{nm}_f")
        fn("")
        a.label(f"{nm}_j")
        a.raw(".p2align 3")
    for half in range(2):
        for i in range(8 * half, 8 * half + 8):
            w = WT + 2 * i
            a(pk_fma_b(pn(i), EPR, w, False, pn(i)))
            a(pk_fma_b(pi(i), EPI, w, False, pi(i), neg=True))
            a(pk_fma_b(pn(i), EPI, w, True, pn(i), neg=True))
            a(pk_fma_b(pi(i), EPR, w, True, pi(i), neg=True))
        for arr, base in ((0, RN), (1, IA)):
            for sub in range(2):
                d = PK + 16 * arr + 4 * (2 * sub + half)
                for mm in range(4):
                    m = 4 * half + mm
                    a(f"v_cvt_pk_bf16_f32 v{d+mm}, v{base+4*m+sub}, v{base+4*m+2+sub}")
        def stores(fl):
            for arr in range(2):
                for sub in range(2):
                    ist = 2 * sub + half
                    a(f"buffer_store_dwordx4 {vr(PK+16*arr+4*ist,4)}, v243, s[36:39], s{28+4*arr+ist} offen {fl}")
        two_way(f"ac_hs{half}", stores)
    st()
    a("s_barrier")
    st()
    CFR = 112
    def cf(i, ks, mt): return CFR + 16 * i + 8 * ks + 4 * mt
    def cread(tiles):
        cur = None
        for i in tiles:
            if i // 4 != cur:
                cur = i // 4
                a(f"v_add_u32 v{vA0}, {cur*65536}, v{vB0}") if cur else a(f"v_mov_b32 v{vA0}, v{vB0}")
                a(f"v_xor_b32 v{vA1}, 64, v{vA0}")
            for ks in range(2):
                for mt in range(2):
                    a(f"ds_read_b128 {vr(cf(i,ks,mt),4)}, v{vA1 if ks else vA0} offset:{16384*(i%4) + 2048*mt}")
    a("s_waitcnt vmcnt(8)")
    cread(range(CP1))
    a("s_waitcnt vmcnt(0)")
    two_way("ac_fs", lambda fl: a(f"buffer_store_dword v{vT2}, v{vFW}, s[24:27], 0 offen {fl}"))
    st()
    cread(range(CP1, 9))
    for arr in range(2):
        for ist in range(4):
            a(f"ds_write_b128 v{vOW}, {vr(PK+16*arr+4*ist,4)} offset:{arr*16384 + ist*1024}")
    a("s_waitcnt lgkmcnt(0)")
    st()
    ACC, HF = 16, [80, 96]
    def acc(nt, mt): return ACC + 8 * nt + 4 * mt
    def set2(stage):
        slot = (stage % 5) * 32768
        a(f"v_add_u32 v{vR0}, {slot}, v{vRb}") if slot else a(f"v_mov_b32 v{vR0}, v{vRb}")
        a(f"v_xor_b32 v{vR1}, 64, v{vR0}")
    def g2_units(g):
        stage, u = g // 4, g % 4
        if stage < 8: return [(u >> 1, 4 * (u & 1) + ist) for ist in range(4)]
        return [(ks, 2 * u + k) for k in range(2) for ks in range(2)]
    def g2_reads(g):
        o = []
        for j, (ks, nt) in enumerate(g2_units(g)):
            off = ks * 8192 + (nt & 3) * 1024 + (nt >> 2) * 512
            o.append((f"ds_read_b64_tr_b16 {vr(HF[g&1]+4*j,2)}, v{vR0} offset:{off}", f"x{g}_{j}"))
            o.append((f"ds_read_b64_tr_b16 {vr(HF[g&1]+4*j+2,2)}, v{vR1} offset:{off}", f"h{g}_{j}"))
        return o
    def g2_mfmas(g):
        stage = g // 4
        o = []
        for j, (ks, nt) in enumerate(g2_units(g)):
            for mt in range(2):
                D = acc(nt, mt)
                Cs = "0" if (stage == 0 and ks == 0) else vr(D, 4)
                o.append((f"v_mfma_f32_16x16x32_bf16 {vr(D,4)}, {vr(HF[g&1]+4*j,4)}, {vr(cf(stage,ks,mt),4)}, {Cs}", f"h{g}_{j}"))
        return o
    def ewrites(nts):
        return [f"ds_write_addtid_b32 v{acc(nt,mt)+r} offset:{nt*2048 + mt*1024 + r*256}" for nt in nts for mt in range(2) for r in range(4)]
    set2(0)
    if DELAY == "a_g0": a(f"s_sleep {DSLP}")
    a("s_barrier")
    st()
    for t, tag in g2_reads(0): a(t); lg.issue(tag)
    for g in range(36):
        nxt = g2_reads(g + 1) if g + 1 < 36 else []
        if g % 4 == 3 and g < 35:
            set2(g // 4 + 1)
            a("s_barrier")
        ew = ewrites([2 * (g - 33), 2 * (g - 33) + 1]) if g > 32 else []
        if g == 35:
            lg.wait("ew")
            a("s_barrier")
        for i, (t, tag) in enumerate(g2_mfmas(g)):
            lg.wait(tag)
            a(t)
            if nxt:
                rt, rtag = nxt.pop(0); a(rt); lg.issue(rtag)
            for _ in range(2):
                if ew: a(ew.pop(0)); lg.issue("ew")
    st()
    for t in ewrites([6, 7]): a(t)
    a("s_waitcnt lgkmcnt(0)")
    a("s_barrier")
    st.dump()
    a("s_endpgm")

def gen_ah(a):
    vm = Ctr(a, "vmcnt", 63)
    st = St(a, 1); st0 = st
    if AHPRIO: a(f"s_setprio {AHPRIO}")
    st2 = st
    if DETAIL == 2:
        st = lambda: None
        st.dump = st2.dump
    ka = Args(a); ka.want(4, 0, 2)
    ka.want(8, 24, 8)
    ka.want(6, 64, 2)
    ka.want(16, 128, 4)
    ka.want(20, 144, 2)
    sC, sS, sT0, sT1, sJ, sKO, sXB, sBB, sLB, sCB, sHB = range(48, 59)
    decode_cs(a, sC, sS, sT0, sT1)
    a(f"s_lshl_b32 s{sT0}, s{sT0}, 2")
    a(f"s_add_u32 s{sKO}, s{sS}, s{sT0}")
    a(f"s_cmp_ge_u32 s{sKO}, 9")
    a(f"s_cselect_b32 s{sT0}, 9, 0")
    a(f"s_sub_u32 s{sKO}, s{sKO}, s{sT0}")
    a(f"s_lshl_b32 s{sKO}, s{sKO}, 7")
    a(f"s_and_b32 s{sJ}, s{sW}, 3")
    vL, vT, vT2, vCH, vLR = 1, 2, 3, 4, 5
    vX, vB, vC = 8, 12, 16
    a(f"v_and_b32 v{vL}, 63, v0")
    a(f"v_lshrrev_b32 v{vLR}, 3, v{vL}")
    a(f"v_lshrrev_b32 v{vT}, 4, v{vL}")
    a(f"v_and_b32 v{vCH}, 7, v{vL}")
    a(f"v_xor_b32 v{vCH}, v{vCH}, v{vT}")
    a(f"v_lshlrev_b32 v{vCH}, 4, v{vCH}")
    a(f"v_lshrrev_b32 v{vT}, 5, v{vL}")
    a(f"v_lshlrev_b32 v{vT2}, 5, v{vT}")
    a(f"v_bfe_u32 v{vT}, v{vL}, 3, 1")
    a(f"v_lshl_add_u32 v{vT2}, v{vT}, 4, v{vT2}")
    a(f"v_bfe_u32 v{vT}, v{vL}, 4, 1")
    a(f"v_add_u32 v{vT2}, v{vT2}, v{vT}")
    a(f"v_mul_u32_u24 v{vT2}, 1152, v{vT2}")
    a(f"v_xor_b32 v{vT}, 64, v{vCH}")
    a(f"v_add_u32 v{vX}, v{vT2}, v{vCH}")
    a(f"v_add_u32 v{vX+1}, v{vT2}, v{vT}")
    a(f"v_add_u32 v{vX+2}, {2304-2048}, v{vX}")
    a(f"v_add_u32 v{vX+3}, {64*1152+2304-3072}, v{vX+1}")
    a(f"v_add_u32 v{vX+1}, {64*1152-1024}, v{vX+1}")
    a(f"v_mul_u32_u24 v{vT2}, 1152, v{vLR}")
    a(f"v_add_u32 v{vB}, v{vT2}, v{vCH}")
    a(f"v_add_u32 v{vB+1}, v{vT2}, v{vT}")
    a(f"v_add_u32 v{vB+1}, {8*1152-1024}, v{vB+1}")
    a(f"s_mul_i32 s{sXB}, s{sC}, {128*1152}")
    a(f"s_mul_i32 s{sT0}, s{sJ}, {4*1152}")
    a(f"s_add_u32 s{sXB}, s{sXB}, s{sT0}")
    a(f"s_lshl_b32 s{sT0}, s{sS}, 2")
    a(f"s_add_u32 s{sT0}, s{sT0}, s{sJ}")
    a(f"s_mul_i32 s{sBB}, s{sT0}, {16*1152}")
    a(f"s_lshl_b32 s{sLB}, s{sJ}, 12")
    ka.get(); st0()
    srd(a, 24, 4, 2048 * 1152)
    srd(a, 28, 8, 576 * 1152)
    srd(a, 32, 10, 576 * 1152)
    def adv(reg):
        a(f"s_add_u32 s{reg}, s{reg}, 128")
        a(f"s_cmp_ge_u32 s{reg}, 1152")
        a(f"s_cselect_b32 s{reg}, 0, s{reg}")
    sKB = 59
    a(f"s_mov_b32 s{sKB}, s{sKO}")
    def issue_x(i):
        slot = (i % 5) * 32768
        a(f"s_add_u32 s{sT0}, s{sXB}, s{sKO}")
        a(f"s_add_u32 m0, s{sLB}, {slot}")
        adv(sKO)
        for e in range(4):
            a(f"buffer_load_dwordx4 v{vX+e}, s[24:27], s{sT0} offen offset:{e*1024} {NT} lds"); vm.issue(f"i{i}")
    def issue_b(i):
        slot = (i % 5) * 32768
        a(f"s_add_u32 s{sT1}, s{sBB}, s{sKB}")
        for ai in range(2):
            a(f"s_add_u32 m0, s{sLB}, {slot + 16384 + ai*2048}")
            if ai == 0: adv(sKB)
            for e in range(2):
                a(f"buffer_load_dwordx4 v{vB+e}, s[{28+4*ai}:{31+4*ai}], s{sT1} offen offset:{e*1024} lds"); vm.issue(f"i{i}")
    def issue_g1(i):
        issue_x(i); issue_b(i)
    st()
    if MISSFIRST == 1:
        issue_g1(0); issue_b(1); issue_b(2)
    elif MISSFIRST == 2:
        issue_g1(0); issue_b(1); issue_x(1)
    else:
        for i in range(XA): issue_g1(i)
    st()
    vFP, vONE, vDM, vFR = 21, 22, 23, 29
    srd(a, 40, 20, F_BYTES, WS_F)
    vDN, vDW = 20, 31
    a(f"s_mul_i32 s{sT0}, s{sC}, {9*128}")
    a(f"v_and_b32 v{vT}, 3, v{vL}")
    a(f"v_lshl_add_u32 v{vT}, v{vT}, 2, s{sT0}")
    a(f"v_lshrrev_b32 v{vFR}, 2, v{vL}")
    a(f"v_lshl_add_u32 v{vFR}, v{vFR}, 7, v{vT}")
    a(f"v_subrev_u32 v{vT}, 36, v{vL}")
    a(f"v_min_u32 v{vT}, 8, v{vT}")
    a(f"v_lshl_add_u32 v{vDN}, v{vT}, 7, s{sT0}")
    a(f"v_add_u32 v{vT}, 16, v{vDN}")
    a(f"v_cmp_gt_u32 vcc, 36, v{vL}")
    a(f"v_cndmask_b32 v{vFR}, v{vT}, v{vFR}, vcc")
    a(f"s_lshl_b32 s{sT1}, s{sS}, 7")
    a(f"s_add_u32 s{sT0}, s{sT0}, s{sT1}")
    a(f"v_mov_b32 v{vDW}, s{sT0}")
    a(f"v_mov_b32 v{vT}, {OOB}")
    a(f"v_cmp_eq_u32 vcc, 0, v{vL}")
    a(f"v_cndmask_b32 v{vDW}, v{vT}, v{vDW}, vcc")
    a(f"v_mov_b32 v{vONE}, 1")
    a(f"s_getreg_b32 s60, hwreg(HW_REG_XCC_ID)")
    a(f"s_and_b32 s60, s60, 15")
    sKC, sHO, sLH = 61, 62, 63
    a(f"s_cmp_lt_u32 s{sJ}, 2")
    a(f"s_cselect_b32 s36, s12, s14")
    a(f"s_cselect_b32 s37, s13, s15")
    a(f"s_mov_b32 s38, {576*1152}")
    a(f"s_mov_b32 s39, 0x00020000")
    srd(a, 44, 16, 2048 * 4608)
    a(f"s_lshl_b32 s{sKC}, s{sS}, 7")
    a(f"s_lshl_b32 s{sT0}, s{sS}, 6")
    a(f"s_and_b32 s{sT1}, s{sJ}, 1")
    a(f"s_lshl_b32 s{sT1}, s{sT1}, 5")
    a(f"s_add_u32 s{sT0}, s{sT0}, s{sT1}")
    a(f"s_mul_i32 s{sCB}, s{sT0}, 1152")
    a(f"v_mov_b32 v{vC}, v{vB}")
    a(f"v_mov_b32 v{vC+1}, v{vB+1}")
    a(f"v_add_u32 v{vC+2}, {16*1152-2048}, v{vB}")
    a(f"v_add_u32 v{vC+3}, {16*1152-2048}, v{vB+1}")
    vDM = 56
    a(f"v_lshrrev_b32 v{vT}, 4, v{vL}")
    a(f"v_mul_u32_u24 v{vDM}, 4608, v{vT}")
    a(f"v_and_b32 v{vT}, 15, v{vL}")
    a(f"v_lshl_add_u32 v{vDM}, v{vT}, 4, v{vDM}")
    for e in range(1, 4): a(f"v_add_u32 v{vDM+e}, {e*(18432-1024)}, v{vDM}")
    vXO, vOO, vER, vDO, vER2 = 24, 25, 26, 27, 30
    a(f"s_lshl_b32 s{sT0}, s{sC}, 7")
    a(f"s_lshl_b32 s{sT1}, s{sJ}, 3")
    a(f"s_add_u32 s{sT0}, s{sT0}, s{sT1}")
    a(f"v_bfe_u32 v{vT}, v{vL}, 3, 1")
    a(f"v_lshl_add_u32 v{vT2}, v{vT}, 5, s{sT0}")
    a(f"v_and_b32 v{vT}, 4, v{vL}")
    a(f"v_add_u32 v{vT2}, v{vT2}, v{vT}")
    a(f"v_lshrrev_b32 v{vT}, 4, v{vL}")
    a(f"v_and_b32 v{vCH}, 3, v{vL}")
    a(f"v_lshl_add_u32 v{vCH}, v{vT}, 2, v{vCH}")
    a(f"s_lshl_b32 s{sT1}, s{sS}, 4")
    a(f"v_add_u32 v{vDO}, s{sT1}, v{vCH}")
    a(f"v_mul_u32_u24 v{vXO}, 1152, v{vT2}")
    a(f"v_lshl_add_u32 v{vXO}, v{vDO}, 3, v{vXO}")
    a(f"v_mul_u32_u24 v{vOO}, 4608, v{vT2}")
    a(f"v_lshl_add_u32 v{vOO}, v{vDO}, 4, v{vOO}")
    a(f"v_lshlrev_b32 v{vDO}, 3, v{vDO}")
    a(f"v_and_b32 v{vER}, 15, v{vL}")
    a(f"v_lshlrev_b32 v{vER}, 4, v{vER}")
    a(f"v_bfe_u32 v{vT}, v{vL}, 4, 1")
    a(f"v_lshl_add_u32 v{vER}, v{vT}, 10, v{vER}")
    a(f"v_lshrrev_b32 v{vT}, 5, v{vL}")
    a(f"v_lshl_add_u32 v{vER}, v{vT}, 14, v{vER}")
    a(f"s_lshl_b32 s{sT0}, s{sJ}, 11")
    a(f"v_add_u32 v{vER}, s{sT0}, v{vER}")
    a(f"s_lshl_b32 s{sLH}, s{sJ}, 13")
    def trow(k): return 64 * (k >> 2) + (k & 3)
    XS, DS, DF, SK = 32, 48, 52, 64
    a(f"global_load_dwordx2 {vr(DS,2)}, v{vDO}, s[6:7]"); vm.issue("dsk")
    a(f"s_lshl_b32 s{sHB}, s{sC}, 7")
    a(f"s_lshl_b32 s{sT0}, s{sJ}, 5")
    a(f"s_add_u32 s{sHB}, s{sHB}, s{sT0}")
    a(f"s_mul_i32 s{sHB}, s{sHB}, 4608")
    a(f"s_lshl_b32 s{sHO}, s{sS}, 8")
    a(f"s_add_u32 s{sHO}, s{sHO}, 256")
    a(f"s_cmp_ge_u32 s{sHO}, 2304")
    a(f"s_cselect_b32 s{sHO}, 0, s{sHO}")
    def issue_c(tiles):
        for i in tiles:
            a(f"s_add_u32 s{sT0}, s{sCB}, s{sKC}")
            a(f"s_add_u32 m0, s{sLB}, {16384*i}")
            adv(sKC)
            for e in range(4):
                a(f"buffer_load_dwordx4 v{vC+e}, s[36:39], s{sT0} offen offset:{e*1024} lds"); vm.issue("c")
    for s in range(9):
        vm.wait(f"i{s}")
        a("s_barrier")
        if s == 0 or DETAIL == 1: st()
        if MISSFIRST == 1 and s == 0:
            issue_x(1); issue_x(2)
        elif MISSFIRST == 2 and s == 0:
            issue_b(2); issue_x(2)
        elif s + XA <= 8: issue_g1(s + XA)
        elif CEARLY and s == 7: issue_c([0, 1])
        elif CEARLY and s == 8: issue_c([2, 3])
    if DETAIL == 1:
        st_real = st
        st = lambda: None
        st.dump = st_real.dump
    a("s_barrier")
    st()
    issue_c(range(4 if CEARLY else 0, 9))
    def skipl():
        for k in range(8):
            if k % 4 == 0: a(f"s_mov_b32 s{sT0}, {trow(k)*1152}")
            a(f"buffer_load_dwordx2 {vr(XS+2*k,2)}, v{vXO}, s[24:27], s{sT0} offen offset:{(k&3)*1152}"); vm.issue("sk")
    if SKW == 0: skipl()
    a(f"v_lshlrev_b32 v{DF}, 16, v{DS}")
    a(f"v_and_b32 v{DF+1}, 0xffff0000, v{DS}")
    a(f"v_lshlrev_b32 v{DF+2}, 16, v{DS+1}")
    a(f"v_and_b32 v{DF+3}, 0xffff0000, v{DS+1}")
    def skipc(k):
        x = XS + 2 * k; d = SK + 4 * k
        a(f"v_lshlrev_b32 v{d}, 16, v{x}")
        a(f"v_and_b32 v{d+1}, 0xffff0000, v{x}")
        a(f"v_lshlrev_b32 v{d+2}, 16, v{x+1}")
        a(f"v_and_b32 v{d+3}, 0xffff0000, v{x+1}")
        for r in range(4): a(f"v_mul_f32 v{d+r}, v{d+r}, v{DF+r}")
        for r in range(4): a(f"v_cvt_pk_bf16_f32 v{d+r}, 0, v{d+r}")
    vm.wait_all()
    st()
    a("s_barrier")
    if SKW == 1: skipl()
    a(f"s_cmp_lg_u32 s{sJ}, 0")
    a(f"s_cbranch_scc1 ah_poll_ok")
    a.label("ah_poll")
    a(f"buffer_load_dword v{vT}, v{vFR}, s[40:43], 0 offen sc1")
    a("s_waitcnt vmcnt(0)")
    a(f"v_cmp_ne_u32 vcc, 1, v{vT}")
    a(f"s_and_b32 vcc_hi, vcc_hi, 15")
    a(f"s_cmp_lg_u64 vcc, 0")
    a(f"s_cbranch_scc1 ah_poll")
    a(f"v_cmp_ne_u32 vcc, s60, v{vT}")
    a(f"s_lshr_b32 s60, vcc_hi, 4")
    if not FAST: a(f"s_mov_b32 s60, 1")
    a.label("ah_poll_ok")
    st()
    a("s_barrier")
    st2()
    def issue_h(i, b):
        slot = (i % 5) * 32768
        a(f"s_add_u32 s{sT0}, s{sHB}, s{sHO}")
        a(f"s_add_u32 m0, s{sLH}, {slot + 4096*b}")
        if b == 1:
            a(f"s_add_u32 s{sT0}, s{sT0}, {16*4608}")
            a(f"s_add_u32 s{sHO}, s{sHO}, 256")
            a(f"s_cmp_ge_u32 s{sHO}, 2304")
            a(f"s_cselect_b32 s{sHO}, 0, s{sHO}")
        for e in range(4):
            a(f"buffer_load_dwordx4 v{vDM+e}, s[44:47], s{sT0} offen offset:{e*1024} {HLD} lds"); vm.issue(f"h{i}")
    halves = [(i, b) for i in range(1, 9) for b in range(2)]
    for _ in range(HA):
        issue_h(*halves.pop(0))
        if DETAIL == 3: st()
    for s in range(1, 9):
        vm.wait(f"h{s}")
        a("s_barrier")
        if s == 1 or DETAIL == 2: st2()
        for _ in range(2 + (1 if (s <= HA2) else 0)):
            if halves: issue_h(*halves.pop(0))
        if s == 8:
            a(f"s_cmp_lg_u32 s{sJ}, 0")
            a(f"s_cbranch_scc1 ah_dn_j")
            a(f"s_cmp_eq_u32 s60, 0")
            a(f"s_cbranch_scc1 ah_dn_f")
            a(f"buffer_store_dword v{vONE}, v{vDW}, s[40:43], 0 offen offset:20 sc1")
            a(f"s_branch ah_dn_j")
            a.label("ah_dn_f")
            a(f"buffer_store_dword v{vONE}, v{vDW}, s[40:43], 0 offen offset:20")
            a.label("ah_dn_j")
            vm.wait_all()
        if s == 7:
            for k in range(5): skipc(k)
        if s == 8:
            for k in range(5, 8): skipc(k)
    a(f"s_cmp_lg_u32 s{sJ}, 0")
    a(f"s_cbranch_scc1 ah_dp_ok")
    a.label("ah_dp")
    a(f"buffer_load_dword v{vT}, v{vDN}, s[40:43], 0 offen offset:20 sc1")
    a("s_waitcnt vmcnt(0)")
    a(f"v_cmp_ne_u32 vcc, 1, v{vT}")
    a(f"s_cmp_lg_u64 vcc, 0")
    a(f"s_cbranch_scc1 ah_dp")
    a.label("ah_dp_ok")
    RB = 96
    a("s_setprio 3")
    for rho in range(2):
        a("s_barrier")
        if rho == 1: st()
        for r in range(4):
            for h in range(2):
                a(f"ds_read_b128 {vr(RB+8*r+4*h,4)}, v{vER} offset:{h*32768 + rho*8192 + r*256}")
        for r in range(4):
            k = 4 * rho + r
            a(f"s_waitcnt lgkmcnt({6-2*r})")
            d = SK + 4 * k
            for h in range(2):
                for i in range(4): a(f"v_add_f32 v{d+i}, v{d+i}, v{RB+8*r+4*h+i}")
            a(f"s_mov_b32 s{sT0}, {trow(k)*4608}")
            a(f"buffer_store_dwordx4 {vr(d,4)}, v{vOO}, s[44:47], s{sT0} offen {OUT_SC}")
    st.dump()
    a("s_endpgm")

U_ST = 4160
def ubase(w): return w * 16640 + (w >> 1) * 64
T_CH, T_ROW = 9216, 288
TB = 0
U1 = 73728
KB, K_CH = U1 + 66624, 4608
assert KB + 4 * K_CH <= LDS
Y_OFF = [4160, 8320]
BOUT_SC = "nt"

def b_group(a, sG, sT0):
    a(f"s_sub_u32 s{sT0}, s2, {NA+NP}")
    a(f"s_and_b32 s{sG}, s{sT0}, 7")
    a(f"s_mul_i32 s{sG}, s{sG}, 9")
    a(f"s_lshr_b32 s{sT0}, s{sT0}, 3")
    a(f"s_add_u32 s{sG}, s{sG}, s{sT0}")

def s_ubase(a, dst, sJ, tmp):
    a(f"s_mul_i32 s{dst}, s{sJ}, 16640")
    a(f"s_lshr_b32 s{tmp}, s{sJ}, 1")
    a(f"s_lshl_b32 s{tmp}, s{tmp}, 6")
    a(f"s_add_u32 s{dst}, s{dst}, s{tmp}")

def k_addresses(a, vK, vBase, sJ, sT0, vI, vQ, vT, vT2):
    a(f"s_mul_i32 s{sT0}, s{sJ}, {K_CH}")
    a(f"s_add_u32 s{sT0}, s{sT0}, {KB+480}")
    a(f"v_lshlrev_b32 v{vT}, 5, v{vI}")
    a(f"v_sub_u32 v{vBase}, s{sT0}, v{vT}")
    a(f"v_lshlrev_b32 v{vT}, 3, v{vQ}")
    a(f"v_sub_u32 v{vK}, v{vBase}, v{vT}")
    a(f"v_lshrrev_b32 v{vT}, 1, v{vQ}")
    a(f"v_lshlrev_b32 v{vT}, 9, v{vT}")
    a(f"v_and_b32 v{vT2}, 1, v{vQ}")
    a(f"v_lshl_add_u32 v{vT}, v{vT2}, 4, v{vT}")
    a(f"v_sub_u32 v{vK+1}, v{vBase}, v{vT}")
    a(f"v_lshlrev_b32 v{vT}, 9, v{vQ}")
    a(f"v_sub_u32 v{vK+2}, v{vBase}, v{vT}")

def k_write(a, vK, W):
    for t in range(2):
        a(f"ds_write_b64 v{vK}, {vr(W+2*t,2)} offset:{2*(2044-240-256*t)}")
    a(f"ds_write_b128 v{vK+1}, {vr(W+4,4)} offset:{2*(2040-240-512)}")
    a(f"ds_write_b128 v{vK+2}, {vr(W+8,4)} offset:{2*(2032-240-1024)}")
    a(f"ds_write_b128 v{vK+2}, {vr(W+12,4)} offset:{2*(2032-240-1024)+16}")

def hmul(z, x, f, conj=False):
    n = "neg_hi:[1,0,0]" if conj else "neg_lo:[1,0,0]"
    return [f"v_pk_mul_f16 v{z}, v{x}, v{f} op_sel:[0,0] op_sel_hi:[1,0]",
            f"v_pk_fma_f16 v{z}, v{x}, v{f}, v{z} op_sel:[1,1,0] op_sel_hi:[0,1,1] {n}"]

class KGen:
    PB = [1, 2, 3, 4, 8, 12, 16]
    def __init__(self, a, R0, sTB, sT0, vL, vI, vQ, p0, sSC):
        self.a = a; self.sTB = sTB; self.sT0 = sT0; self.rs = T_ROW; self.p0 = p0; self.sSC = sSC
        self.vL, self.vI, self.vQ = vL, vI, vQ
        self.ex, self.tiles = xrows()
        self.rowidx = {e: (i if e < 256 else i - 16) for i, e in enumerate(self.ex)}
        r = R0
        self.PAR = r; r += 4
        self.LDT = r; r += 1
        self.vXA = r; r += 4
        self.ER, self.TH, self.DT, self.T0, self.T1 = range(r, r + 5); r += 5
        self.HB = r; r += 40
        self.HP = r; r += 3
        self.CV = r; r += 8
        r = (r + 3) // 4 * 4
        self.KA = r; r += 16
        self.F1 = r; r += 32
        self.XF = r; r += 24
        self.W = self.F1
        self.end = r
        self.m0 = False
    def hb(self, ps, name):
        names = [f"P{k}" for k in self.PB] + ["G2", "G3"] + [f"C{k}" for k in (0, 4, 8, 12)] + [f"Q{n}" for n in range(1, 8)]
        return self.HB + 20 * ps + names.index(name)
    def load_params(self, vm, sCH, tag):
        a = self.a; t0 = self.T0; t1 = self.T1; p = self.p0
        a(f"s_lshl_b32 s{self.sT0}, s{sCH}, 8")
        a(f"v_lshl_add_u32 v{t0}, v{self.vL}, 2, s{self.sT0}")
        a(f"s_lshl_b32 s{self.sT0}, s{sCH}, 1")
        a(f"v_mov_b32 v{t1}, s{self.sT0}")
        for k in range(4):
            a(f"global_load_dword v{self.PAR+k}, v{t0}, s[{p+2*k}:{p+1+2*k}]"); vm.issue(tag)
        a(f"global_load_ushort v{self.LDT}, v{t1}, s[{p+8}:{p+9}]"); vm.issue(tag)
    def addresses(self):
        a = self.a; vT, vT2 = self.T0, self.T1; vXA = self.vXA; vI, vQ = self.vI, self.vQ; rs = self.rs
        a(f"v_lshl_add_u32 v{vT}, v{vQ}, 4, s{self.sTB}")
        a(f"v_mul_u32_u24 v{vT2}, {rs}, v{vI}")
        a(f"v_add_u32 v{vXA}, v{vT}, v{vT2}")
        a(f"v_cmp_gt_u32 vcc, 8, v{vI}")
        a(f"v_lshlrev_b32 v{self.ER}, 2, v{vI}")
        a(f"v_and_b32 v{self.ER}, 31, v{self.ER}")
        for t in (1, 2, 3):
            rows = [self.rowidx[e] for e in self.tiles[t]]
            b = min(rows); nib = [r - b for r in rows]
            lo = sum(nib[i] << (4 * i) for i in range(8)); hi = sum(nib[8 + i] << (4 * i) for i in range(8))
            a(f"v_mov_b32 v{vXA+t}, {lo:#x}")
            a(f"v_mov_b32 v{vT2}, {hi:#x}")
            a(f"v_cndmask_b32 v{vXA+t}, v{vT2}, v{vXA+t}, vcc")
            a(f"v_bfe_u32 v{vXA+t}, v{vXA+t}, v{self.ER}, 4")
            a(f"v_mul_u32_u24 v{vXA+t}, {rs}, v{vXA+t}")
            if b: a(f"v_add_u32 v{vXA+t}, {b*rs}, v{vXA+t}")
            a(f"v_add_u32 v{vXA+t}, v{vXA+t}, v{vT}")
    def scale(self):
        a = self.a; T0, T1, DT, PAR = self.T0, self.T1, self.DT, self.PAR; sS = self.sSC
        a(f"v_and_b32 v{T0}, 0x7fff7fff, v{PAR+2}")
        a(f"v_and_b32 v{T1}, 0x7fff7fff, v{PAR+3}")
        a(f"v_pk_max_u16 v{T0}, v{T0}, v{T1}")
        a(f"v_lshlrev_b32 v{T1}, 16, v{T0}")
        a(f"v_max_u32 v{T0}, v{T0}, v{T1}")
        a(f"v_lshlrev_b32 v{DT}, 16, v{self.LDT}")
        a(f"v_mul_f32 v{DT}, {LOG2E}, v{DT}")
        a(f"v_max_u32_dpp v{T0}, v{T0}, v{T0} row_shr:1 row_mask:0xf bank_mask:0xf")
        a(f"v_exp_f32 v{DT}, v{DT}")
        for sh in (2, 4, 8):
            a(f"v_max_u32_dpp v{T0}, v{T0}, v{T0} row_shr:{sh} row_mask:0xf bank_mask:0xf")
        a(f"v_cvt_pk_bf16_f32 v{DT}, 0, v{DT}")
        a(f"v_max_u32_dpp v{T0}, v{T0}, v{T0} row_bcast:15 row_mask:0xa bank_mask:0xf")
        a(f"v_max_u32_dpp v{T0}, v{T0}, v{T0} row_bcast:31 row_mask:0xc bank_mask:0xf")
        a(f"v_readlane_b32 s{sS}, v{T0}, 63")
        a(f"s_lshr_b32 s{sS}, s{sS}, 23")
        a(f"s_sub_u32 s{sS}, 262, s{sS}")
        a(f"s_min_u32 s{sS}, s{sS}, 253")
        a(f"s_sub_u32 s{sS+1}, 255, s{sS}")
        a(f"s_lshl_b32 s{sS}, s{sS}, 23")
        a(f"s_lshl_b32 s{sS+1}, s{sS+1}, 23")
    def bases(self, ps):
        a = self.a
        ER, TH, DT, T0, T1, PAR, W = self.ER, self.TH, self.DT, self.T0, self.T1, self.PAR, self.W
        E1, E2, E4, E8, G1, G2, G4, CC, Q1, X, Y = [W + 2 * k for k in range(11)]
        def unp(d, s): a(f"v_lshlrev_b32 v{d}, 16, v{s}" if ps == 0 else f"v_and_b32 v{d}, 0xffff0000, v{s}")
        def cv(name, pair, neg=False):
            a(f"v_cvt_pk_f16_f32 v{self.hb(ps, name)}, v{pair}, {'-' if neg else ''}v{pair+1}")
        def cm(z, x, f):
            for t in cmul_pk(z, x, f): a(t)
        unp(ER, PAR); unp(TH, PAR + 1); unp(CC, PAR + 2); unp(CC + 1, PAR + 3)
        for t in [f"v_mul_f32 v{ER}, {LOG2E}, v{ER}", f"v_exp_f32 v{ER}, v{ER}", f"v_mul_f32 v{TH}, v{TH}, v{DT}",
                  f"v_cvt_pk_bf16_f32 v{ER}, 0, v{ER}", f"v_mul_f32 v{TH}, {INV2PI}, v{TH}", f"v_mul_f32 v{ER}, v{ER}, v{DT}",
                  f"v_mul_f32 v{ER}, 0xbfb8aa3b, v{ER}",
                  f"v_mul_f32 v{CC}, s{self.sSC}, v{CC}", f"v_mul_f32 v{CC+1}, s{self.sSC}, v{CC+1}"]: a(t)
        for t in cexp(E1, E1 + 1, ER, TH, None, T0, T1): a(t)
        for t in cexp(G1, G1 + 1, ER, TH, f32hex(16.0), T0, T1): a(t)
        for t in cexp(Q1, Q1 + 1, ER, TH, f32hex(256.0), T0, T1): a(t)
        a.raw(".p2align 3")
        cv("P1", E1); cm(E2, E1, E1); cv("P2", E2); cm(X, E2, E1); cv("P3", X); cm(E4, E2, E2); cv("P4", E4)
        cm(E8, E4, E4); cv("P8", E8); cm(X, E8, E4); cv("P12", X); cv("P16", G1)
        cm(G2, G1, G1); cv("G2", G2); cm(X, G2, G1); cv("G3", X); cm(G4, G2, G2)
        cv("C0", CC, True); cm(X, CC, G4); cv("C4", X, True); cm(Y, X, G4); cv("C8", Y, True); cm(X, Y, G4); cv("C12", X, True)
        cv("Q1", Q1); prev = Q1
        for n in range(2, 8):
            d = X if n % 2 == 0 else Y
            cm(d, prev, Q1); cv(f"Q{n}", d); prev = d
    def begin(self):
        a = self.a
        if not self.m0:
            a(f"s_mov_b32 m0, s{self.sTB}"); a("s_nop 0"); self.m0 = True
        a.raw(".p2align 3")
    def wr(self, row, reg): self.a(f"ds_write_addtid_b32 v{reg} offset:{row*self.rs}")
    def tmp(self):
        self.cvn = getattr(self, "cvn", 0) + 1
        return self.CV + self.cvn % 8
    def preg(self, ps, r):
        return self.hb(ps, f"P{r}") if r in self.PB else self.HP + (r - 6) // 4
    def batch1(self, ps):
        a = self.a
        a(f"v_mov_b32 v{self.T0}, 0x3c00")
        self.begin()
        self.wr(0, self.T0)
        for r in range(1, 16):
            if r in self.PB: self.wr(r, self.hb(ps, f"P{r}"))
            else:
                d = self.preg(ps, r) if r % 4 == 2 else self.tmp()
                for t in hmul(d, self.hb(ps, f"P{r & 12}"), self.hb(ps, f"P{r & 3}")): a(t)
                self.wr(r, d)
        for b in range(16):
            c = self.hb(ps, f"C{b & 12}")
            if b & 3 == 0: self.wr(16 + b, c)
            else:
                g = self.hb(ps, ("P16", "G2", "G3")[(b & 3) - 1]); d = self.tmp()
                for t in hmul(d, c, g, conj=True): a(t)
                self.wr(16 + b, d)
        for ks in range(4):
            a(f"ds_read_b128 {vr(self.F1+8*ks,4)}, v{self.vXA} offset:{ks*64}")
            a(f"ds_read_b128 {vr(self.F1+8*ks+4,4)}, v{self.vXA} offset:{ks*64 + 16*self.rs}")
    def batch2(self, ps):
        a = self.a
        self.begin()
        for e in self.ex:
            if e < 256: continue
            q = self.hb(ps, f"Q{e // 256}")
            if e % 256:
                d = self.tmp()
                for t in hmul(d, q, self.preg(ps, e % 256)): a(t)
                self.wr(self.rowidx[e], d)
            else: self.wr(self.rowidx[e], q)
    def mm(self, ps):
        a = self.a; XF, KA, F1 = self.XF, self.KA, self.F1
        def rd(ks):
            for t in range(3):
                a(f"ds_read_b128 {vr(XF+12*(ks%2)+4*t,4)}, v{self.vXA+1+t} offset:{ks*64}")
        a("s_waitcnt lgkmcnt(14)")
        rd(0); rd(1)
        for ks in range(4):
            Cs = "0" if (ps == 0 and ks == 0) else vr(KA, 4)
            a(f"v_mfma_f32_16x16x32_f16 {vr(KA,4)}, {vr(F1+8*ks,4)}, {vr(F1+8*ks+4,4)}, {Cs}")
        for ks in range(4):
            a(f"s_waitcnt lgkmcnt({3 if ks < 3 else 0})")
            for t in range(3):
                Cs = "0" if (ps == 0 and ks == 0) else vr(KA + 4 + 4 * t, 4)
                a(f"v_mfma_f32_16x16x32_f16 {vr(KA+4+4*t,4)}, {vr(XF+12*(ks%2)+4*t,4)}, {vr(F1+8*ks+4,4)}, {Cs}")
            if ks + 2 < 4: rd(ks + 2)
    def run(self, hooks={}):
        def h(k):
            if k in hooks:
                hooks[k](); self.m0 = False
        self.scale(); self.bases(0); h(0); self.bases(1); h(1)
        self.batch1(0); h(2); self.batch2(0); h(3); self.mm(0); h(4)
        self.batch1(1); h(5); self.batch2(1); h(6); self.mm(1)
    def pack(self):
        a = self.a; W = self.F1; KA = self.KA
        a(f"v_mul_f32 v{self.T0}, s{self.sSC+1}, v{self.DT}")
        for k in range(16):
            if k not in (11, 15): a(f"v_mul_f32 v{KA+k}, v{KA+k}, v{self.T0}")
        for t in range(2):
            k = KA + 4 * t
            a(f"v_cvt_pk_bf16_f32 v{W+2*t}, v{k+3}, v{k+2}")
            a(f"v_cvt_pk_bf16_f32 v{W+2*t+1}, v{k+1}, v{k}")
        k = KA + 8
        for j, (x, y) in enumerate(((2, 2), (1, 1), (1, 0), (0, 0))):
            a(f"v_cvt_pk_bf16_f32 v{W+4+j}, v{k+x}, v{k+y}")
        k = KA + 12
        for j, (x, y) in enumerate(((2, 2), (2, 2), (1, 1), (1, 1), (1, 1), (1, 0), (0, 0), (0, 0))):
            a(f"v_cvt_pk_bf16_f32 v{W+8+j}, v{k+x}, v{k+y}")

def local_ch(a, dst, sG, sJ, rnd, tmp):
    a(f"s_lshr_b32 s{tmp}, s{sJ}, 1")
    a(f"s_lshl_b32 s{tmp}, s{tmp}, 1")
    a(f"s_add_u32 s{tmp}, s{tmp}, s{sJ}")
    a(f"s_lshl_b32 s{dst}, s{sG}, 3")
    a(f"s_add_u32 s{dst}, s{dst}, s{tmp}")
    if rnd: a(f"s_add_u32 s{dst}, s{dst}, {2*rnd}")

def gen_bc(a):
    vm = Ctr(a, "vmcnt", 63)
    st = St(a, 2); st0 = st
    st2 = st
    if DETAIL == 4:
        st = lambda: None
        st.dump = st2.dump
    ka = Args(a); ka.want(4, 72, 8)
    ka.want(12, 104, 4)
    ka.want(16, 136, 4)
    sG, sT0, sT1, sCH, sUB, sTB, sKO = 48, 49, 50, 51, 52, 53, 54
    b_group(a, sG, sT0)
    local_ch(a, sCH, sG, sW, 0, sT0)
    vL, vI, vQ, vT, vT2, vAR, vBR, vYW, vK = range(1, 10)
    a(f"v_and_b32 v{vL}, 63, v0")
    a(f"v_and_b32 v{vI}, 15, v0")
    a(f"v_lshrrev_b32 v{vQ}, 4, v{vL}")
    a(f"s_mul_i32 s{sTB}, s{sW}, {T_CH}")
    kg = KGen(a, 12, sTB, sT0, vL, vI, vQ, 6, 56)
    ka.get(); st0()
    kg.load_params(vm, sCH, "par")
    if PBPOS < 0: a("s_barrier")
    kg.addresses()
    k_addresses(a, vK, vBR, sW, sT0, vI, vQ, vT, vT2)
    a(f"v_lshl_add_u32 v{vBR}, v{vQ}, 4, v{vBR}")
    s_ubase(a, sUB, sW, sT0)
    a(f"s_add_u32 s{sUB}, s{sUB}, {U1}")
    a(f"v_sub_u32 v{vT}, 3, v{vI}")
    a(f"v_and_b32 v{vT}, 3, v{vT}")
    a(f"v_add3_u32 v{vT2}, v{vI}, v{vT}, 1")
    a(f"v_lshl_add_u32 v{vT2}, v{vQ}, 3, v{vT2}")
    a(f"v_mul_u32_u24 v{vAR}, {U_ST}, v{vT}")
    a(f"v_lshl_add_u32 v{vAR}, v{vT2}, 1, v{vAR}")
    a(f"v_add_u32 v{vAR}, s{sUB}, v{vAR}")
    a(f"v_lshlrev_b32 v{vYW}, 5, v{vI}")
    a(f"v_lshl_add_u32 v{vYW}, v{vQ}, 3, v{vYW}")
    a(f"v_add_u32 v{vYW}, s{sUB}, v{vYW}")
    Z = kg.XF
    for i in range(4): a(f"v_mov_b32 v{Z+i}, 0")
    a(f"s_mul_i32 s{sT0}, s{sW}, {K_CH}")
    a(f"s_add_u32 s{sT0}, s{sT0}, {KB}")
    a(f"v_min_u32 v{vT}, 29, v{vL}")
    a(f"v_lshl_add_u32 v{vT}, v{vT}, 4, s{sT0}")
    a(f"ds_write_b128 v{vT}, {vr(Z,4)} offset:4096")
    vZ, vKF, vFV, vKO, KW = 200, 201, 202, 203, 204
    srd(a, 36, 16, 256)
    srd(a, 40, 18, KF_BYTES, WS_KF)
    srd(a, 44, 18, 72 * 4 * 4096, WS_K)
    a(f"v_and_b32 v{vZ}, 3, v0")
    a(f"v_lshlrev_b32 v{vZ}, 2, v{vZ}")
    a(f"s_lshl_b32 s{sT0}, s{sG}, 7")
    a(f"s_lshl_b32 s{sT1}, s{sW}, 2")
    a(f"s_add_u32 s{sT0}, s{sT0}, s{sT1}")
    a(f"v_mov_b32 v{vKF}, s{sT0}")
    a(f"v_lshlrev_b32 v{vKO}, 4, v{vL}")
    a(f"s_lshl_b32 s{sKO}, s{sG}, 2")
    a(f"s_add_u32 s{sKO}, s{sKO}, s{sW}")
    a(f"s_lshl_b32 s{sKO}, s{sKO}, 12")
    st()
    vm.wait("par")
    st()
    if DELAY == "b_kg": a(f"s_sleep {DSLP}")
    if PBPOS == 9: a("s_barrier")
    kg.run({PBPOS: lambda: a("s_barrier")}); kg.pack(); k_write(a, vK, kg.F1)
    a(f"buffer_load_dword v{vFV}, v{vZ}, s[36:39], 0 offen offset:240 sc1")
    a("s_waitcnt lgkmcnt(0)")
    st()
    a("s_barrier")
    st()
    ACC = 12; AF = [48, 112]; BF = [80, 144]; YP = 176
    lg = Ctr(a, "lgkmcnt", 15)
    LO, HI = [0, 1, 2, 3], [4, 5, 6, 7]
    phases = [LO, HI, LO, HI]
    a(f"s_mov_b32 m0, s{sUB}")
    def pairs_of(ph): return [(m, n - m) for m in range(8) for n in phases[ph] if n >= m]
    def reads(it):
        ph, dp = it // 8, it % 8
        o = []; s = it % 2; seen = set()
        for (m, n1) in pairs_of(ph):
            if ("a", m) not in seen:
                seen.add(("a", m)); off = 64 * (dp + 8 * m)
                o.append((f"ds_read_b64 {vr(AF[s]+4*m,2)}, v{vAR} offset:{off}", f"a{it}_{m}"))
                o.append((f"ds_read_b64 {vr(AF[s]+4*m+2,2)}, v{vAR} offset:{off+8}", f"a{it}_{m}"))
            if ("b", n1) not in seen:
                seen.add(("b", n1))
                o.append((f"ds_read_b128 {vr(BF[s]+4*n1,4)}, v{vBR} offset:{2*(1792-256*n1)+64*dp}", f"b{it}_{n1}"))
        return o
    sched = {it: reads(it + 1) if it < 31 else [] for it in range(32)}
    for t in (8, 24):
        r = reads(t)
        hib = [x for x in r if x[1][0] == "b" and int(x[1].split("_")[1]) >= 4]
        hia = [x for x in r if x[1][0] == "a" and int(x[1].split("_")[1]) >= 4]
        sched[t - 1] = [x for x in r if x not in hib and x not in hia]
        for k, x in enumerate(hib): sched[t - 5 + k].append(x)
        sched[t] = hia + sched[t]
    def ypack(tiles):
        o = []
        for n in tiles:
            y = ACC + 4 * n
            o.append(f"v_cvt_pk_bf16_f32 v{YP+2*n}, v{y}, v{y+1}")
            o.append(f"v_cvt_pk_bf16_f32 v{YP+2*n+1}, v{y+2}, v{y+3}")
        return o
    def ywrite(tiles, rnd):
        return [f"ds_write_addtid_b32 v{YP+2*n+h} offset:{Y_OFF[rnd] + 512*n + 256*h}" for n in tiles for h in range(2)]
    def h_flag():
        a("s_waitcnt vmcnt(0)")
        wait_cleared(a, "bc", vFV, vZ, 36)
        a(f"buffer_load_dword v{vFV}, v{vKF}, s[40:43], 0 offen sc1")
    def h_img():
        a.label("bc_kp")
        a("s_waitcnt vmcnt(0)")
        a(f"v_cmp_eq_u32 vcc, 1, v{vFV}")
        a(f"s_cmp_lg_u64 vcc, 0")
        a(f"s_cbranch_scc1 bc_kp_ok")
        a(f"s_sleep 4")
        a(f"buffer_load_dword v{vFV}, v{vKF}, s[40:43], 0 offen sc1")
        a(f"s_branch bc_kp")
        a.label("bc_kp_ok")
        for e in range(4):
            a(f"buffer_load_dwordx4 {vr(KW+4*e,4)}, v{vKO}, s[44:47], s{sKO} offen offset:{1024*e} sc1")
        a("s_barrier")
    def stq():
        st(); lg.q = [] if (gen.STAMPS and DETAIL != 4) else lg.q
    def h_switch():
        stq()
        a("s_waitcnt vmcnt(0)")
        a(f"v_subrev_u32 v{vAR}, {U1-TB}, v{vAR}")
    def h_pub():
        lg.wait("yw")
        a("s_barrier")
    def h_a2():
        a("s_barrier")
        stq()
    def h_d1():
        h_pub(); stq()
    lines = a.lines; a.lines = []; k_write(a, vK, KW); kw = [(x.strip(), "kw") for x in a.lines]; a.lines = lines
    sched[15] = [y for x in kw for y in (x, None)] + sched[15]
    hooks = {8: h_a2, 8 + KH1: h_flag, 8 + KH2: h_img, 15: h_switch, 19: h_pub, 26: h_d1}
    fillers = {9: ypack(LO),
               15: [None] * 18 + ywrite(LO, 0),
               16: [None] * 2 + ypack(HI), 17: ywrite(HI, 0),
               24: [None] * 4 + ypack(LO), 25: ywrite(LO, 1)}
    for r, tag in reads(0): a(r); lg.issue(tag)
    for it in range(32):
        ph, dp = it // 8, it % 8
        if it in hooks: hooks[it]()
        if DELAY == f"b_it{it}": a(f"s_sleep {DSLP}")
        if DETAIL == 4 and it in DIT:
            st2(); lg.q = []
        pairs = pairs_of(ph)
        nxt = list(sched[it])
        fl = list(fillers.get(it, []))
        nn = len(nxt); np_ = len(pairs); s = it % 2
        started = set()
        for i, (m, n1) in enumerate(pairs):
            D = ACC + 4 * (m + n1)
            Cs = "0" if (dp == 0 and D not in started) else vr(D, 4)
            started.add(D)
            lg.wait(f"a{it}_{m}"); lg.wait(f"b{it}_{n1}")
            a(f"v_mfma_f32_16x16x32_bf16 {vr(D,4)}, {vr(AF[s]+4*m,4)}, {vr(BF[s]+4*n1,4)}, {Cs}")
            k = 1 if nn <= np_ else ((i + 1) * nn // np_ - i * nn // np_)
            for _ in range(k):
                if nxt:
                    x = nxt.pop(0)
                    if x: a(x[0]); lg.issue(x[1])
            if fl:
                f = fl.pop(0)
                if f:
                    a(f)
                    if f.startswith("ds_"): lg.issue("yw")
        assert not nxt and not fl
    for t in ypack(HI) + ywrite(HI, 1): a(t)
    a("s_waitcnt lgkmcnt(0)")
    a("s_barrier")
    st.dump()
    a("s_endpgm")

def mod9(a, r):
    a(f"s_cmp_ge_u32 s{r}, 9")
    a(f"s_cselect_b32 s62, 9, 0")
    a(f"s_sub_u32 s{r}, s{r}, s62")

KH1, KH2, HTWHEN = 3, 5, 0
HT_FL = ""
def gen_bh(a):
    vm = Ctr(a, "vmcnt", 63)
    st = St(a, 3); st0 = st
    if BPRIO and not BPLATE: a(f"s_setprio {BPRIO}")
    ka = Args(a); ka.want(4, 72, 2)
    ka.want(8, 120, 8)
    ka.want(16, 24, 8)
    sG, sT0, sT1, sK, sJ, sSEL0, sSEL1, sRB, sMB = 48, 49, 50, 51, 52, 53, 54, 55, 56
    b_group(a, sG, sT0)
    a(f"s_mov_b32 s{sK}, s{sT0}")
    a(f"s_and_b32 s{sJ}, s{sW}, 3")
    vL, vT, vT2, vUO, vUH, vUH0, vRG, vHF, vYR, vOO = range(1, 11)
    a(f"v_and_b32 v{vL}, 63, v0")
    a(f"v_mul_u32_u24 v{vUO}, {2*1152}, v{vL}")
    a(f"s_lshl_b32 s{sT0}, s{sG}, 4")
    a(f"s_mul_i32 s{sRB}, s{sJ}, {256*1152}")
    a(f"s_add_u32 s{sRB}, s{sRB}, s{sT0}")
    a(f"v_mov_b32 v{vT2}, {OOB}")
    a(f"v_mov_b32 v{vUH}, {127*1152}")
    a(f"v_cmp_eq_u32 vcc, 0, v{vL}")
    a(f"v_cndmask_b32 v{vUH}, v{vT2}, v{vUH}, vcc")
    a(f"s_sub_u32 s{sT1}, s{sRB}, 1152")
    a(f"v_mov_b32 v{vUH0}, s{sT1}")
    a(f"v_cndmask_b32 v{vUH0}, v{vT2}, v{vUH0}, vcc")
    a(f"v_cmp_eq_u32 vcc, 256, v0")
    a(f"v_cndmask_b32 v{vUH0}, v{vUH0}, v{vT2}, vcc")
    a(f"v_bfe_u32 v{vRG}, v0, 1, 7")
    a(f"v_and_b32 v{vHF}, 1, v0")
    a(f"v_lshl_add_u32 v{vT2}, v{vHF}, 3, s{sT0}")
    ka.get(); st0()
    srd(a, 24, 4, 2048 * 1152)
    a("s_barrier")
    UR = 16; DS = 64
    def blk(hh, k): return UR + 12 * (2 * hh + k)
    def uload(hh, k):
        b = blk(hh, k); rows = 1024 * hh + 128 * k
        if hh == 0 and k == 0:
            a(f"buffer_load_dwordx4 {vr(b+8,4)}, v{vUH0}, s[24:27], 0 offen")
        else:
            a(f"s_add_u32 s{sT0}, s{sRB}, {(rows-128)*1152}")
            a(f"buffer_load_dwordx4 {vr(b+8,4)}, v{vUH}, s[24:27], s{sT0} offen")
        a(f"s_add_u32 s{sT0}, s{sRB}, {rows*1152}")
        a(f"buffer_load_dwordx4 {vr(b,4)}, v{vUO}, s[24:27], s{sT0} offen")
        a(f"buffer_load_dwordx4 {vr(b+4,4)}, v{vUO}, s[24:27], s{sT0} offen offset:1152")
        for _ in range(3): vm.issue(f"u{hh}{k}")
    if BBT:
        sel = [int(c) for c in str(BBT)]
        a(f"s_lshl_b32 s{sT0}, s{sJ}, 2")
        a(f"s_lshr_b32 s{sT0}, {sum(x << (4 * i) for i, x in enumerate(sel))}, s{sT0}")
        a(f"s_and_b32 s{sT0}, s{sT0}, 15")
        a(f"s_cmp_eq_u32 s{sT0}, 0")
        a(f"s_cbranch_scc1 bh_nobt")
        a(f"s_add_u32 s{sT0}, s{sT0}, s{sK}")
        mod9(a, sT0)
        a(f"s_lshl_b32 s{sT0}, s{sT0}, 7")
        a(f"s_mul_i32 s{sT1}, s{sK}, {64*1152}")
        a(f"s_add_u32 s{sT0}, s{sT0}, s{sT1}")
        a(f"v_mul_u32_u24 v{vT}, 1152, v{vL}")
        for ai in range(2):
            srd(a, 32, 16 + 2 * ai, 576 * 1152)
            a(f"buffer_load_dword v{252+ai}, v{vT}, s[32:35], s{sT0} offen")
        a.label("bh_nobt")
    if DELAY == "b_u": a(f"s_sleep {DSLP}")
    uload(0, 0); uload(0, 1)
    a(f"global_load_dwordx2 {vr(DS,2)}, v{vT2}, s[8:9]"); vm.issue("ds")
    if USPLIT >= 1: uload(1, 0)
    if USPLIT >= 2: uload(1, 1)
    srd(a, 28, 10, 2048 * 4608)
    a(f"s_mov_b32 s{sSEL0}, 0x05040100")
    a(f"s_mov_b32 s{sSEL1}, 0x07060302")
    a(f"v_mul_u32_u24 v{vYR}, {ubase(2)}, v{vHF}")
    a(f"v_lshl_add_u32 v{vYR}, v{vRG}, 4, v{vYR}")
    a(f"v_mul_u32_u24 v{vOO}, {8*4608}, v{vRG}")
    a(f"v_lshl_add_u32 v{vOO}, v{vHF}, 4, v{vOO}")
    a(f"s_lshl_b32 s{sMB}, s{sJ}, 9")
    TMP = 192
    def zero_pads(base):
        a(f"v_mov_b32 v{TMP}, 0")
        a(f"v_bfe_u32 v{vT}, v{vL}, 3, 2")
        a(f"v_and_b32 v{vT2}, 7, v{vL}")
        a(f"v_cmp_gt_u32 vcc, 32, v{vL}")
        a(f"v_or_b32 v{TMP+1}, 2, v{vT}")
        a(f"v_cndmask_b32 v{vT}, v{TMP+1}, v{vT}, vcc")
        a(f"v_cndmask_b32 v{vT2}, 8, v{vT2}, vcc")
        a(f"v_mul_u32_u24 v{vT}, {U_ST}, v{vT}")
        a(f"v_lshl_add_u32 v{vT}, v{vT2}, 2, v{vT}")
        s_ubase(a, sT1, sJ, sT0)
        if base: a(f"s_add_u32 s{sT1}, s{sT1}, {base}")
        a(f"v_add_u32 v{vT}, s{sT1}, v{vT}")
        a(f"ds_write_b32 v{vT}, v{TMP}")
    kk = [0]
    def stage(r, hh, k):
        b = blk(hh, k)
        if r == 0:
            vm.wait(f"u{hh}{k}")
            for d in range(4):
                a(f"v_mov_b32_dpp v{b+8+d}, v{b+4+d} wave_shr:1 row_mask:0xf bank_mask:0xf")
        if FINEP and (r, hh) != (0, 0): a("s_setprio 1")
        a(f"s_add_u32 m0, s{sMB}, {(U1 if r == 0 else TB) + 2048*hh + 256*k}")
        a.raw(".p2align 3")
        for w in range(4):
            dw = 2 * (w >> 1) + r; sel = sSEL1 if w & 1 else sSEL0
            t = TMP + 8 + 2 * (kk[0] % 4); kk[0] += 1
            a(f"v_perm_b32 v{t}, v{b+4+dw}, v{b+dw}, s{sel}")
            a(f"v_perm_b32 v{t+1}, v{b+dw}, v{b+8+dw}, s{sel}")
            for sft in range(4):
                a(f"ds_write_addtid_b32 v{t + (sft & 1)} offset:{ubase(w) + sft*U_ST + 32 + 4*(sft >> 1)}")
    def htouch():
        if FINEP: a("s_setprio 0")
        if NCP < 162:
            a(f"s_add_u32 s{sT0}, s{sJ}, {NCP // 18}")
            a(f"s_cmp_ge_u32 s{sT0}, 9")
            a(f"s_cbranch_scc1 bh_noct")
            a(f"s_and_b32 s{sT1}, s2, 7")
            a(f"s_add_u32 s{sT0}, s{sT0}, s{sT1}")
            mod9(a, sT0)
            a(f"s_lshl_b32 s{sT0}, s{sT0}, 7")
            a(f"s_mul_i32 s{sT1}, s{sK}, {64*1152}")
            a(f"s_add_u32 s{sT0}, s{sT0}, s{sT1}")
            a(f"v_mul_u32_u24 v{vT}, 1152, v{vL}")
            for ai in range(2):
                srd(a, 32, 20 + 2 * ai, 576 * 1152)
                a(f"buffer_load_dword v{252+ai}, v{vT}, s[32:35], s{sT0} offen")
            a.label("bh_noct")
        if not HTOUCH_B: return
        a(f"s_and_b32 s{sT0}, s2, 7")
        a(f"s_mul_i32 s{sT0}, s{sT0}, {256*4608}")
        a(f"s_lshl_b32 s{sT1}, s{sK}, 8")
        a(f"s_add_u32 s{sT0}, s{sT0}, s{sT1}")
        a(f"v_and_b32 v{vT}, 255, v0")
        a(f"v_mul_u32_u24 v{vT}, 4608, v{vT}")
        a(f"buffer_load_dword v250, v{vT}, s[28:31], s{sT0} offen {HT_FL}"); vm.issue("ht")
        a(f"buffer_load_dword v251, v{vT}, s[28:31], s{sT0} offen offset:128 {HT_FL}"); vm.issue("ht")
    zero_pads(U1)
    stage(0, 0, 0)
    st()
    if USPLIT < 1: uload(1, 0)
    stage(0, 0, 1)
    a("s_waitcnt lgkmcnt(0)")
    st()
    if USPLIT < 2 and UL2: uload(1, 1)
    if BPRIO and BPLATE: a(f"s_setprio {BPRIO}")
    a("s_barrier")
    if USPLIT < 2 and not UL2: uload(1, 1)
    stage(0, 1, 0); stage(0, 1, 1)
    a("s_waitcnt lgkmcnt(0)")
    st()
    if HTWHEN == 0: htouch()
    a("s_barrier")
    if HTWHEN == 1: htouch()
    zero_pads(TB)
    for hh in range(2):
        for k in range(2): stage(1, hh, k)
    a("s_waitcnt lgkmcnt(0)")
    st()
    a("s_barrier")
    if HTWHEN == 2: htouch()
    OUT = 96; DF = 12; YR = 16; YT = 160
    a(f"v_add_u32 v{vT}, {U1}, v{vYR}")
    for r in range(2):
        for hh in range(2):
            for ip in range(2):
                a(f"ds_read_b128 {vr(YR+16*r+8*hh+4*ip,4)}, v{vYR if r else vT} offset:{ip*16640 + 32 + 2048*hh}")
    a(f"v_mov_b32 v{vYR}, v{vT}")
    if BPRIO == 1: a("s_setprio 0")
    a(f"v_lshlrev_b32 v{DF}, 16, v{DS}")
    a(f"v_and_b32 v{DF+1}, 0xffff0000, v{DS}")
    a(f"v_lshlrev_b32 v{DF+2}, 16, v{DS+1}")
    a(f"v_and_b32 v{DF+3}, 0xffff0000, v{DS+1}")
    a("s_waitcnt lgkmcnt(0)")
    def unp(d, s, row):
        if row % 2 == 0: a(f"v_lshlrev_b32 v{d}, 16, v{s}")
        else: a(f"v_and_b32 v{d}, 0xffff0000, v{s}")
    for hh in (1, 0):
        for row in range(8):
            d = OUT + 32 * hh + 4 * row
            for c in range(4): unp(d + c, YR + 16 * (c >> 1) + 8 * hh + 4 * (c & 1) + row // 2, row)
            for c in range(4): a(f"v_mul_f32 v{d+c}, v{d+c}, v{DF+c}")
            for c in range(4): a(f"v_cvt_pk_bf16_f32 v{d+c}, 0, v{d+c}")
    st()
    a(f"v_mul_u32_u24 v{vYR}, {ubase(2)}, v{vHF}")
    a(f"v_lshrrev_b32 v{vT}, 5, v{vRG}")
    a(f"v_lshl_add_u32 v{vYR}, v{vT}, 9, v{vYR}")
    a(f"v_bfe_u32 v{vT}, v{vRG}, 1, 4")
    a(f"v_lshl_add_u32 v{vYR}, v{vT}, 2, v{vYR}")
    a(f"v_and_b32 v{vT}, 1, v{vRG}")
    a(f"v_lshl_add_u32 v{vYR}, v{vT}, 7, v{vYR}")
    a(f"v_add_u32 v{vYR}, {U1}, v{vYR}")
    a("s_barrier")
    def yread(r, hs):
        for hh in hs:
            for ip in range(2):
                for k in range(4):
                    a(f"ds_read_b32 v{YR+8*hh+4*ip+k}, v{vYR} offset:{ip*16640 + Y_OFF[r] + 2048*hh + 64*(k>>1) + 256*(k&1)}")
        a("s_waitcnt lgkmcnt(0)")
    def yrow(r, hh, row):
        d = OUT + 32 * hh + 4 * row + 2 * r; t = YT + 2 * (row % 4)
        for ip in range(2): unp(t + ip, YR + 8 * hh + 4 * ip + row // 2, row)
        a(f"v_add_f32 v{d}, v{d}, v{t}")
        a(f"v_add_f32 v{d+1}, v{d+1}, v{t+1}")
        a(f"v_cvt_pk_bf16_f32 v{d}, 0, v{d}")
        a(f"v_cvt_pk_bf16_f32 v{d+1}, 0, v{d+1}")
    if BPRIO == 1: a("s_setprio 1")
    yread(0, (0, 1))
    if BPRIO == 1: a("s_setprio 0")
    for hh in (1, 0):
        for row in range(8): yrow(0, hh, row)
    if BPRIO == 1: a("s_setprio 1")
    def wb(nm):
        a(f"s_lshl_b32 s{sT0}, s{sK}, 2")
        a(f"s_add_u32 s{sT0}, s{sT0}, s{sJ}")
        a(f"s_cmp_lg_u32 s{sT0}, 0")
        a(f"s_cbranch_scc1 {nm}")
        a("buffer_wbl2 sc1")
        a.label(nm)
    if WBL2 & 1: wb("bh_wb1")
    st()
    for hh in (0, 1):
        if hh == 1 and WBL2 & 2: wb("bh_wb2")
        a(f"s_lshl_b32 s{sT0}, s{sG}, 5")
        a(f"s_add_u32 s{sT0}, s{sT0}, {2304 + 1024*4608*hh}")
        a("s_barrier")
        st()
        if FINEP: a("s_setprio 1")
        yread(1, (hh,))
        if FINEP: a("s_setprio 0")
        for row in range(8):
            yrow(1, hh, row)
            a(f"buffer_store_dwordx4 {vr(OUT+32*hh+4*row,4)}, v{vOO}, s[28:31], s{sT0} offen {BOUT_SC}")
            if row < 7: a(f"s_add_u32 s{sT0}, s{sT0}, 4608")
    st.dump()
    a("s_endpgm")

UL2 = 1
USPLIT = 1
HTOUCH_B = 1
UTOUCH = 1
CTOUCH = 1
BTOUCH = 0
PTS = 13
PBSEL = 0
NCP = 162
PNOW = 0
PFIRST = 1
PBPOS = -1
CTOUCH_B = 0
def gen_p(a):
    vm = Ctr(a, "vmcnt", 63)
    ka = Args(a); ka.want(4, 72, 8)
    ka.want(12, 104, 4)
    ka.want(16, 136, 4)
    ka.want(24, 24, 8)
    sP, sT0, sT1, sCH, sG, sJ, sTB, sI, sSL, sAR, sTL = range(48, 59)
    vL, vI, vQ, vT, vT2, vRow, vZ = range(1, 8)
    a(f"s_sub_u32 s{sP}, s2, {NA}")
    a(f"v_and_b32 v{vL}, 63, v0")
    a(f"v_and_b32 v{vI}, 15, v0")
    a(f"v_lshrrev_b32 v{vQ}, 4, v{vL}")
    a(f"v_mul_u32_u24 v{vRow}, 1152, v{vL}")
    a(f"v_and_b32 v{vZ}, 3, v0")
    a(f"v_lshlrev_b32 v{vZ}, 2, v{vZ}")
    a(f"s_lshr_b32 s{sI}, s{sP}, 3")
    a(f"s_lshl_b32 s{sI}, s{sI}, 3")
    a(f"s_add_u32 s{sI}, s{sI}, s{sW}")
    a(f"s_lshl_b32 s{sG}, s{sP}, 1")
    a(f"s_lshr_b32 s{sT0}, s{sW}, 2")
    a(f"s_add_u32 s{sG}, s{sG}, s{sT0}")
    a(f"s_min_u32 s{sG}, s{sG}, 71")
    a(f"s_and_b32 s{sJ}, s{sW}, 3")
    local_ch(a, sCH, sG, sJ, 1, sT0)
    a(f"s_mul_i32 s{sTB}, s{sW}, {T_CH}")
    kg = KGen(a, 12, sTB, sT0, vL, vI, vQ, 6, 60)
    ka.get()
    srd(a, 36, 16, 256)
    a(f"s_cmp_lt_u32 s{sP}, 36")
    a(f"s_cbranch_scc1 p_noclear")
    srd(a, 40, 18, CLR_BYTES, WS_S)
    for i in range(4): a(f"v_mov_b32 v{200+i}, -1")
    a(f"v_lshlrev_b32 v{vT}, 4, v0")
    nper = -(-CLR_BYTES // (4 * 8192))
    a(f"s_sub_u32 s{sT1}, s{sP}, 36")
    a(f"s_mul_i32 s{sT0}, s{sT1}, {nper*8192}")
    for i in range(nper):
        a(f"buffer_store_dwordx4 v[200:203], v{vT}, s[40:43], s{sT0} offen sc1")
        a(f"s_add_u32 s{sT0}, s{sT0}, 8192")
    a(f"s_lshl_b32 s{sT1}, s{sT1}, 2")
    a(f"v_mov_b32 v{vT}, s{sT1}")
    a(f"v_mov_b32 v{vT2}, {OOB}")
    a(f"v_cmp_eq_u32 vcc, 0, v0")
    a(f"v_cndmask_b32 v{vT}, v{vT2}, v{vT}, vcc")
    a(f"v_mov_b32 v{vT2}, 1")
    a("s_waitcnt vmcnt(0)")
    a("s_barrier")
    a(f"buffer_store_dword v{vT2}, v{vT}, s[36:39], 0 offen offset:240 sc1")
    a.label("p_noclear")
    kg.load_params(vm, sCH, "par")
    sX = 59
    a(f"s_and_b32 s{sX}, s2, 7")
    tn = [0]
    def touch(ptr0, rep, ntask, tilesel=None):
        tn[0] += 1; nm = f"p_t{tn[0]}"
        a(f"s_add_u32 s{sSL}, s{sI}, {40*rep}")
        if 40 * rep + 39 >= ntask:
            a(f"s_cmp_ge_u32 s{sSL}, {ntask}")
            a(f"s_cbranch_scc1 {nm}")
        a(f"s_mul_i32 s{sAR}, s{sSL}, 57")
        a(f"s_lshr_b32 s{sAR}, s{sAR}, 9")
        a(f"s_mul_i32 s{sT0}, s{sAR}, 9")
        a(f"s_sub_u32 s{sSL}, s{sSL}, s{sT0}")
        a(f"s_lshr_b32 s{sTL}, s{sAR}, 1")
        if tilesel:
            a(f"s_lshl_b32 s{sTL}, s{sTL}, 2")
            a(f"s_lshr_b32 s{sTL}, {sum(x << (4 * i) for i, x in enumerate(tilesel))}, s{sTL}")
            a(f"s_and_b32 s{sTL}, s{sTL}, 15")
            a(f"s_add_u32 s{sTL}, s{sTL}, s{sSL}")
        else:
            a(f"s_add_u32 s{sTL}, s{sTL}, s{sX}")
        mod9(a, sTL)
        a(f"s_and_b32 s{sAR}, s{sAR}, 1")
        a(f"s_cmp_eq_u32 s{sAR}, 0")
        a(f"s_cselect_b32 s44, s{ptr0}, s{ptr0+2}")
        a(f"s_cselect_b32 s45, s{ptr0+1}, s{ptr0+3}")
        a(f"s_mov_b32 s46, {576*1152}")
        a(f"s_mov_b32 s47, 0x00020000")
        a(f"s_mul_i32 s{sT0}, s{sSL}, {64*1152}")
        a(f"s_lshl_b32 s{sT1}, s{sTL}, 7")
        a(f"s_add_u32 s{sT0}, s{sT0}, s{sT1}")
        a(f"buffer_load_dword v250, v{vRow}, s[44:47], s{sT0} offen")
        a.label(nm)
    bsel = [int(c) for c in str(PBSEL)] if PBSEL else []
    jobs = [(24, r, 18 * len(bsel), bsel) for r in range(-(-18 * len(bsel) // 40))] + [(28, r, NCP, None) for r in range(-(-NCP // 40))]
    alljobs = list(jobs)
    def nxt():
        if jobs: touch(*jobs.pop(0))
    assert jobs[0][2] >= 40
    nxt()
    a(f"s_cmp_ge_u32 s{sP}, 36")
    a(f"s_cbranch_scc1 p_nok")
    kg.addresses()
    a(f"s_waitcnt vmcnt(1)")
    for _ in range(PNOW): nxt()
    kg.run({int(k): nxt for k in str(PTS)}); kg.pack()
    a(f"buffer_load_dword v{vT}, v{vZ}, s[36:39], 0 offen offset:240 sc1")
    srd(a, 40, 18, 72 * 4 * 4096, WS_K)
    a(f"v_lshlrev_b32 v{vT2}, 4, v{vL}")
    a(f"s_lshl_b32 s{sT0}, s{sG}, 2")
    a(f"s_add_u32 s{sT0}, s{sT0}, s{sJ}")
    a(f"s_lshl_b32 s{sT0}, s{sT0}, 12")
    for e in range(4):
        a(f"buffer_store_dwordx4 {vr(kg.F1+4*e,4)}, v{vT2}, s[40:43], s{sT0} offen offset:{1024*e} sc1")
    srd(a, 40, 18, KF_BYTES, WS_KF)
    a(f"s_lshl_b32 s{sT0}, s{sG}, 7")
    a(f"s_lshl_b32 s{sT1}, s{sJ}, 2")
    a(f"s_add_u32 s{sT0}, s{sT0}, s{sT1}")
    a(f"v_mov_b32 v{vI}, s{sT0}")
    a(f"v_mov_b32 v{vQ}, {OOB}")
    a(f"v_cmp_eq_u32 vcc, 0, v{vL}")
    a(f"v_cndmask_b32 v{vI}, v{vQ}, v{vI}, vcc")
    a(f"v_mov_b32 v{vQ}, 1")
    a("s_waitcnt vmcnt(0)")
    if DELAY == "p_pub": a(f"s_sleep {DSLP}")
    wait_cleared(a, "p", vT, vZ, 36)
    a(f"buffer_store_dword v{vQ}, v{vI}, s[40:43], 0 offen sc1")
    while jobs: nxt()
    a("s_endpgm")
    a.label("p_nok")
    for j in alljobs[1:]: touch(*j)
    a("s_endpgm")

def gen_fused(path, prefetch=True):
    a = Asm()
    if EARLYKA:
        a(f"s_load_dwordx16 s[{KA}:{KA+15}], s[0:1], 0")
        a(f"s_load_dwordx16 s[{KA+16}:{KA+31}], s[0:1], 64")
        a(f"s_load_dwordx4 s[{KA+32}:{KA+35}], s[0:1], 128")
        a(f"s_load_dwordx2 s[{KA+36}:{KA+37}], s[0:1], 144")
    a(f"s_cmp_ge_u32 s2, {NA+NB+NP}")
    a("s_cbranch_scc1 k_end")
    a("v_lshrrev_b32 v1, 6, v0")
    if prefetch:
        a("s_getpc_b64 s[4:5]")
        a("s_and_b32 s4, s4, 0xffffff00")
        a("s_lshr_b32 s6, s2, 3")
        a("s_lshl_b32 s6, s6, 11")
        a("v_lshrrev_b32 v2, 5, v0")
        a("v_lshl_add_u32 v2, v2, 7, s6")
        a("v_min_u32 v2, CODE_BYTES-4, v2")
        a("v_and_b32 v2, -4, v2")
        a("global_load_dword v255, v2, s[4:5]")
    a(f"v_readfirstlane_b32 s{sW}, v1")
    a(f"s_cmp_ge_u32 s2, {NA}")
    a("s_cbranch_scc1 role_b")
    a(f"s_cmp_lt_u32 s{sW}, 4")
    a("s_cbranch_scc1 role_ac")
    for lab, fn in (("role_ah", gen_ah), ("role_ac", gen_ac), ("role_b", None), ("role_bh", gen_bh), ("role_bc", gen_bc), ("role_p", gen_p)):
        a.label(lab); a.hist = []
        if fn is None:
            a(f"s_cmp_lt_u32 s2, {NA+NP}")
            a("s_cbranch_scc1 role_p")
            a(f"s_cmp_lt_u32 s{sW}, 4")
            a("s_cbranch_scc1 role_bc")
            continue
        n0 = a.count
        if lab in DELAY.split(","): a(f"s_sleep {DSLP}")
        fn(a)
        print(lab, a.count - n0, end=" ")
    print()
    a.label("k_end")
    a("s_endpgm")
    a.label("code_end")
    hdr = open("concat_heads__ssm_conv_s5__ssm_conv_s4d__prompt.s.ref").read().split("; @launch")[0]
    hdr += f"; @launch grid=({NA+NB+NP},1,1) block=(512,1,1) lds={LDS}\n"
    body = f'.amdgcn_target "amdgcn-amd-amdhsa--gfx950"\n.text\n.globl {KN}\n.p2align 8\n.type {KN},@function\n.set CODE_BYTES, code_end-{KN}\n{KN}:\n' + a.text()
    open(path, "w").write(hdr + body + '.section .rodata,"a"\n' + kd(KN, dict(vgpr=256, accum=256, sgpr=102)))

if __name__ == "__main__":
    out = None
    for x in sys.argv[1:]:
        if x == "st": gen.STAMPS = True
        elif x.startswith("out="): out = x[4:]
        elif "=" in x:
            k, v = x.split("=")
            globals()[k] = int(v) if v.lstrip("-").isdigit() else v
    gen_fused(out or ("f.s" if not gen.STAMPS else "f_st.s"))
```
